```python
import torch

def _softmax(x, axis=-1):
    return torch.softmax(x, dim=axis)

def _gelu(x):
    return torch.nn.functional.gelu(x, approximate='tanh')

def _silu(x):
    return torch.nn.functional.silu(x)

def _sigmoid(x):
    return torch.sigmoid(x)

def _layernorm(x, axis=-1, eps=1e-05):
    m = x.mean(dim=axis, keepdim=True)
    v = x.var(dim=axis, keepdim=True, unbiased=False)
    return (x - m) / torch.sqrt(v + eps)

def _scatter_add(tgt, idx, src, axis=0):
    return tgt.clone().index_add_(axis, idx, src)

def _segment_sum(src, seg, n):
    out = torch.zeros((n,) + src.shape[1:], dtype=src.dtype)
    return out.index_add_(0, seg, src)

def _pad(x, pw):
    flat = tuple((v for pair in reversed(pw) for v in pair))
    return torch.nn.functional.pad(x, flat)
kernel_name = 'interleave_layers__spectral_gfnet__memory_aug_recurrent_mem_tr__prompt'

def setup_inputs():

    _w = lambda a: (lambda t: t.to(torch.bfloat16) if t.is_floating_point() else t)(torch.as_tensor(a))

    def _A_setup():
        B, S, D = (1, 2048, 640)
        Df = D // 2 + 1
        return {'x': _w((lambda *s: torch.randn(*s, dtype=torch.bfloat16) * 0.05)(B, S, D)), 'w_r': _w((lambda *s: torch.randn(*s, dtype=torch.bfloat16) * 0.4)(S, Df) * 0.02), 'w_i': _w((lambda *s: torch.randn(*s, dtype=torch.bfloat16) * 0.4)(S, Df) * 0.02)}
    _A_in = _A_setup()

    def _B_setup():
        B, S, Dm = (1, 2048, 640)
        H, Dh = (32, 128)
        M, seg = (8, 32)
        seg = min(seg, S)
        S = S // seg * seg
        return {'x': _w((lambda *s: torch.randn(*s, dtype=torch.bfloat16) * 0.05)(B, S, Dm)), 'mem0': _w((lambda *s: torch.randn(*s, dtype=torch.bfloat16) * 0.2)(B, M, Dm)), 'Wq': _w((lambda *s: torch.randn(*s, dtype=torch.bfloat16) * 1.6)(Dm, H, Dh) * Dm ** (-0.5)), 'Wk': _w((lambda *s: torch.randn(*s, dtype=torch.bfloat16) * 1.6)(Dm, H, Dh) * Dm ** (-0.5)), 'Wv': _w((lambda *s: torch.randn(*s, dtype=torch.bfloat16) * 0.2)(Dm, H, Dh) * Dm ** (-0.5)), 'Wo': _w((lambda *s: torch.randn(*s, dtype=torch.bfloat16) * 0.2)(H, Dh, Dm) * (H * Dh) ** (-0.5)), 'seg_len': seg}
    _B_in = _B_setup()
    return {'A_x': _A_in['x'], 'A_w_r': _A_in['w_r'], 'A_w_i': _A_in['w_i'], 'B_x': _B_in['x'], 'B_mem0': _B_in['mem0'], 'B_Wq': _B_in['Wq'], 'B_Wk': _B_in['Wk'], 'B_Wv': _B_in['Wv'], 'B_Wo': _B_in['Wo'], 'B_seg_len': _B_in['seg_len']}

def reference(A_x, A_w_r, A_w_i, B_x, B_mem0, B_Wq, B_Wk, B_Wv, B_Wo, B_seg_len):

    def _A_ref(x, w_r, w_i):
        B, S, D = x.shape
        X = (lambda x, axes=(-2, -1): torch.fft.rfft2(x.float(), dim=axes))(x, axes=(-2, -1))
        W = w_r + 1j * w_i
        X = X * W
        y = (lambda x, s, axes=(-2, -1): torch.fft.irfft2(x, s=s, dim=axes).to(torch.bfloat16))(X, (S, D), axes=(-2, -1))
        return y

    def _B_ref(x, mem0, Wq, Wk, Wv, Wo, seg_len):
        B, S, Dm = x.shape
        H, Dh = (Wq.shape[1], Wq.shape[2])
        M = mem0.shape[1]
        scale = Dh ** (-0.5)
        n_seg = S // seg_len
        L = M + seg_len
        idx = torch.arange(L)
        mask = (idx[:, None] < M) | (idx[:, None] >= idx[None, :])
        mem = mem0
        outs = []
        for s in range(n_seg):
            xs = x[:, s * seg_len:(s + 1) * seg_len, :].clone()
            h = torch.concatenate([mem, xs], axis=1)
            q = torch.einsum('btd,dhe->bhte', h, Wq)
            k = torch.einsum('btd,dhe->bhte', h, Wk)
            v = torch.einsum('btd,dhe->bhte', h, Wv)
            scores = torch.einsum('bhqe,bhke->bhqk', q, k) * scale
            scores = torch.where(mask[None, None], scores, -1000000000.0)
            p = _softmax(scores, axis=-1)
            o = torch.einsum('bhqk,bhke->bhqe', p, v)
            o = torch.einsum('bhte,hed->btd', o, Wo)
            mem = o[:, :M, :].clone()
            outs.append(o[:, M:, :])
        return torch.concatenate(outs, axis=1)
    x = A_x
    x = x + _A_ref(_layernorm(x, axis=-1), A_w_r, A_w_i)
    x = x + _B_ref(_layernorm(x, axis=-1), B_mem0, B_Wq, B_Wk, B_Wv, B_Wo, B_seg_len)
    x = x + _A_ref(_layernorm(x, axis=-1), A_w_r, A_w_i)
    x = x + _B_ref(_layernorm(x, axis=-1), B_mem0, B_Wq, B_Wk, B_Wv, B_Wo, B_seg_len)
    return x
```

```python
import re

REG_RE = re.compile(r'^-?\|?(?:abs\()?([vas])(?:\[(\d+):(\d+)\]|(\d+))\)?\|?$')


def regs_of(tok):
    tok = tok.strip()
    if tok in ('vcc', 'vcc_lo', 'vcc_hi'):
        return [('s', 106), ('s', 107)]
    if tok in ('exec', 'exec_lo', 'exec_hi'):
        return [('s', 126), ('s', 127)]
    if tok == 'm0':
        return [('s', 124)]
    m = REG_RE.match(tok)
    if not m:
        return []
    k = m.group(1)
    if m.group(4) is not None:
        return [(k, int(m.group(4)))]
    return [(k, i) for i in range(int(m.group(2)), int(m.group(3)) + 1)]


def v(n, cnt=1, k='v'):
    if k == 'v' and n >= 256:
        k, n = 'a', n - 256
    return f"{k}{n}" if cnt == 1 else f"{k}[{n}:{n + cnt - 1}]"


def s(n, cnt=1):
    return f"s{n}" if cnt == 1 else f"s[{n}:{n + cnt - 1}]"


TRANS = ('v_exp_', 'v_log_', 'v_rcp_', 'v_rsq_', 'v_sqrt_', 'v_sin_', 'v_cos_')
VCC = [('s', 106), ('s', 107)]
EXEC = [('s', 126), ('s', 127)]


def mfma_passes(mn):
    if '4x4x4' in mn:
        return 2
    if '16x16x4_f32' in mn:
        return 8
    if '32x32x2_f32' in mn:
        return 16
    if '_16x16x' in mn:
        return 4
    if '_32x32x' in mn:
        return 8
    raise ValueError(mn)


class Ins:
    __slots__ = ('mn', 'kind', 'defs', 'uses', 'srcc', 'srcab', 'passes', 'text', 'dpp', 'sdata', 'states')


def parse(text):
    t = text.split(';')[0].strip()
    parts = t.split(None, 1)
    mn = parts[0]
    rest = parts[1] if len(parts) > 1 else ''
    toks = [x.strip() for x in rest.split(',')] if rest else []
    mods = ''
    ops = []
    for i, x in enumerate(toks):
        w = x.split()
        if not w:
            continue
        ops.append(w[0])
        if len(w) > 1:
            mods = ' '.join(w[1:]) + ' ' + ' '.join(toks[i + 1:])
            break
    I = Ins()
    I.mn, I.text = mn, text
    I.defs, I.uses, I.srcc, I.srcab, I.passes, I.sdata = [], [], [], [], 0, []
    I.dpp = ('quad_perm' in mods or 'row_' in mods or 'wave_' in mods or mn.endswith('_dpp'))
    I.states = 1
    R = [regs_of(x) for x in ops]
    if mn.startswith('v_mfma'):
        I.kind = 'mfma'; I.passes = mfma_passes(mn)
        I.defs = R[0]; I.srcab = R[1] + R[2]; I.srcc = R[3]; I.uses = I.srcab + I.srcc
    elif mn.startswith('v_smfmac'):
        I.kind = 'mfma'; I.passes = mfma_passes(mn)
        I.defs = R[0]; I.srcab = R[1] + R[2] + R[3]; I.srcc = R[0]; I.uses = I.srcab + I.srcc
    elif mn.startswith('v_'):
        I.kind = 'valu'
        if mn.startswith('v_cmpx'):
            I.defs = R[0] + EXEC; I.uses = sum(R[1:], [])
        elif mn.startswith('v_permlane') and 'swap' in mn or mn.startswith('v_swap'):
            I.defs = R[0] + R[1]; I.uses = R[0] + R[1]
        elif '_co_' in mn or mn.startswith('v_div_scale') or mn.startswith('v_mad_u64'):
            I.defs = R[0] + R[1]; I.uses = sum(R[2:], [])
        else:
            I.defs = R[0] if R else []
            I.uses = sum(R[1:], [])
            if mn.startswith(('v_fmac', 'v_dot2c', 'v_pk_fmac', 'v_writelane')) or I.dpp or 'op_sel' in mods and 'cvt' in mn \
                    or mn.endswith('_sdwa') or 'dst_sel' in mods:
                I.uses = I.uses + R[0]
            if mn.startswith('v_cndmask') and len(ops) == 3:
                I.uses = I.uses + VCC
    elif mn.startswith('ds_'):
        I.kind = 'ds'
        if mn.startswith(('ds_read', 'ds_bpermute', 'ds_permute', 'ds_swizzle')) or '_rtn' in mn:
            I.defs = R[0]; I.uses = sum(R[1:], [])
        else:
            I.uses = sum(R, [])
    elif mn.startswith(('buffer_', 'global_')):
        I.kind = 'vm'
        islds = (' lds' in ' ' + mods) or '_lds_' in mn
        if mn in ('buffer_inv', 'buffer_wbl2'):
            pass
        elif islds:
            I.uses = sum(R, []) + [('s', 124)]
        elif '_load_' in mn:
            I.defs = R[0]; I.uses = sum(R[1:], [])
        elif 'atomic' in mn:
            I.uses = sum(R, [])
            if 'sc0' in mods.split():
                I.defs = R[0]
        else:
            I.uses = sum(R, [])
            d = R[0] if mn.startswith('buffer_') else R[1]
            if len(d) >= 3:
                I.sdata = d
    elif mn.startswith(('s_load', 's_buffer_load', 's_memtime', 's_memrealtime', 's_atomic')):
        I.kind = 'smem'
        I.defs = R[0]; I.uses = sum(R[1:], [])
    elif mn == 's_nop':
        I.kind = 'nop'; I.states = int(ops[0], 0) + 1
    elif mn == 's_waitcnt':
        I.kind = 'wait'
    elif mn.startswith(('s_cbranch', 's_branch', 's_barrier', 's_endpgm', 's_sleep', 's_setprio', 's_setpc', 's_setreg')):
        I.kind = 'ctl'
        if 'vcc' in mn:
            I.uses = VCC
        if mn.startswith('s_setpc'):
            I.uses = R[0]
    elif mn.startswith('s_'):
        I.kind = 'salu'
        if mn.startswith(('s_cmp', 's_bitcmp')):
            I.uses = sum(R, [])
        else:
            I.defs = R[0]; I.uses = sum(R[1:], [])
            if 'saveexec' in mn:
                I.defs = I.defs + EXEC
    else:
        raise ValueError('unknown instr ' + text)
    return I


class Asm:
    def __init__(self, mfma_states=1):
        self.lines = []
        self.hist = []
        self.vm = []
        self.lg = []
        self.smem = False
        self.smem_regs = set()
        self.mfma_states = mfma_states
        self.nops = 0
        self.uid = 0

    def raw(self, text):
        self.lines.append(text)

    def c(self, text):
        self.lines.append('; ' + text)

    def label(self, name):
        self.lines.append(name + ':')

    def newlabel(self, base='L'):
        Asm._n = getattr(Asm, '_n', 0) + 1
        return f"{base}_{Asm._n}"

    def state(self):
        return ([(set(a), b) for a, b in self.vm], [(set(a), b) for a, b in self.lg], self.smem, set(self.smem_regs), list(self.hist))

    def set_state(self, st):
        self.vm = [(set(a), b) for a, b in st[0]]
        self.lg = [(set(a), b) for a, b in st[1]]
        self.smem = st[2]
        self.smem_regs = set(st[3])
        self.hist = list(st[4])

    def forget(self):
        self.vm = []; self.lg = []; self.smem = False; self.smem_regs = set()

    def wait(self, vm=None, lg=None):
        p = []
        if vm is not None:
            vm = min(vm, 63)
            p.append(f"vmcnt({vm})")
            self.vm = self.vm[len(self.vm) - vm:] if vm < len(self.vm) else self.vm
            if vm == 0:
                self.vm = []
        if lg is not None:
            lg = min(lg, 15)
            p.append(f"lgkmcnt({lg})")
            if lg == 0:
                self.lg = []; self.smem = False; self.smem_regs = set()
            elif not self.smem:
                self.lg = self.lg[len(self.lg) - lg:] if lg < len(self.lg) else self.lg
        self._emit(parse("s_waitcnt " + ' '.join(p)))

    def wait_tag(self, tag):
        vm = lg = None
        for i in range(len(self.vm) - 1, -1, -1):
            if self.vm[i][1] == tag:
                vm = len(self.vm) - 1 - i
                break
        for i in range(len(self.lg) - 1, -1, -1):
            if self.lg[i][1] == tag:
                lg = 0 if self.smem else len(self.lg) - 1 - i
                break
        if vm is not None or lg is not None:
            self.wait(vm, lg)

    def need(self, regs):
        I = Ins()
        I.kind = 'valu'; I.defs = []; I.uses = sum((regs_of(x) for x in regs.split(',')), [])
        self._autowait(I, None)

    def _autowait(self, I, nowait):
        touch = set(I.uses) | set(I.defs)
        if nowait:
            touch -= set(nowait)
        vm = lg = None
        for i in range(len(self.vm) - 1, -1, -1):
            if self.vm[i][0] & touch:
                if I.kind == 'vm' and not (self.vm[i][0] & set(I.uses)):
                    continue
                vm = len(self.vm) - 1 - i
                break
        for i in range(len(self.lg) - 1, -1, -1):
            if self.lg[i][0] & touch:
                if I.kind == 'ds' and not (self.lg[i][0] & set(I.uses)):
                    continue
                lg = 0 if self.smem else len(self.lg) - 1 - i
                break
        if self.smem_regs & touch:
            lg = 0
        if vm is not None or lg is not None:
            self.wait(vm, lg)

    def _need(self, P, I):
        n = 0
        pd, iu, idf = set(P.defs), set(I.uses), set(I.defs)
        pv = {r for r in pd if r[0] != 's'}
        ps = {r for r in pd if r[0] == 's'}
        if P.kind == 'valu':
            if I.kind == 'mfma' and pv & iu:
                n = max(n, 2)
            if I.kind == 'mfma' and set(EXEC) & ps:
                n = max(n, 4)
            if I.kind == 'valu':
                if I.dpp and pv & iu:
                    n = max(n, 2)
                if I.dpp and set(EXEC) & ps:
                    n = max(n, 5)
                if I.mn.startswith('v_permlane') and pv & iu:
                    n = max(n, 2)
                if I.mn.startswith('v_permlane') and set(EXEC) & ps:
                    n = max(n, 4)
                if I.mn.startswith(('v_readlane', 'v_readfirstlane')) and pv & iu:
                    n = max(n, 1)
                if I.mn.startswith(('v_readlane', 'v_readfirstlane', 'v_writelane')) and (ps & iu or set(EXEC) & ps):
                    n = max(n, 4)
                if ps & iu:
                    n = max(n, 4 if I.mn.startswith('v_div_fmas') else 2)
                if P.mn.startswith(TRANS) and pv & iu:
                    n = max(n, 1)
                if P.mn.startswith('v_dot') and P.mn != I.mn and pv & (iu | idf):
                    n = max(n, 3)
                if ('sdwa' in P.text or 'op_sel' in P.text) and pv & (iu | idf):
                    n = max(n, 1)
            if I.kind in ('vm', 'ds') and P.mn.startswith(TRANS) and pv & iu:
                n = max(n, 1)
            if I.kind in ('vm', 'ds', 'mfma') and P.mn.startswith('v_dot') and pv & (iu | idf):
                n = max(n, 3)
            if I.kind == 'vm' and ps & iu:
                n = max(n, 5)
            if I.kind in ('salu', 'smem') and ps & iu:
                n = max(n, 1)
        elif P.kind == 'mfma':
            k = {2: 0, 4: 1, 8: 2, 16: 3}[P.passes]
            if I.kind == 'mfma':
                if pd & set(I.srcab):
                    n = max(n, [5, 8, 12, 20][k])
                if pd & set(I.srcc):
                    if list(P.defs) == list(I.srcc) and P.mn == I.mn:
                        n = max(n, [2, 0, 0, 0][k])
                    else:
                        n = max(n, [4, 6, 10, 18][k])
                elif pd & idf:
                    n = max(n, [5, 8, 12, 20][k])
            elif I.kind in ('valu', 'vm', 'ds'):
                if pd & (iu | idf):
                    n = max(n, [5, 8, 12, 20][k])
                if I.kind == 'valu' and set(P.srcc) & idf:
                    n = max(n, [1, 3, 7, 15][k])
        elif P.kind == 'vm':
            if P.sdata and set(P.sdata) & idf:
                n = max(n, 2 if I.kind in ('valu', 'mfma') else 1)
        elif P.kind == 'salu':
            if ('s', 124) in pd and ('s', 124) in iu and I.kind in ('vm', 'ds'):
                n = max(n, 1)
        return n

    def _hazard(self, I):
        need = 0
        H = self.hist
        dist = 0
        for i in range(len(H) - 1, -1, -1):
            P = H[i]
            n = self._need(P, I)
            if n > dist:
                d = dist
                if self.mfma_states == 'time' and P.kind == 'mfma':
                    t, mfree = 1, P.passes
                    for Q in H[i + 1:]:
                        if Q.kind == 'mfma':
                            t = max(t, mfree); mfree = t + Q.passes; t += 1
                        else:
                            t += Q.states
                    d = t - 1
                    if I.kind == 'mfma' and mfree - 1 >= n:
                        d = n
                need = max(need, n - d)
            dist += P.states
            if dist >= 20:
                break
        while need > 0:
            k = min(need, 16)
            self.nops += k
            self._emit(parse(f"s_nop {k - 1}"))
            need -= k

    def _emit(self, I):
        self.lines.append('    ' + I.text)
        self.hist.append(I)
        if len(self.hist) > 24:
            self.hist.pop(0)

    def fence(self, n=20):
        self._emit(parse("s_nop 15"))
        if n > 16:
            self._emit(parse(f"s_nop {n - 17}"))

    def op(self, text, tag=None, nowait=None):
        for line in text.strip().split('\n'):
            line = line.strip()
            if not line or line.startswith(';'):
                continue
            if line.endswith(':'):
                self.label(line[:-1])
                continue
            I = parse(line)
            if I.kind == 'wait':
                m1 = re.search(r'vmcnt\((\d+)\)', line)
                m2 = re.search(r'lgkmcnt\((\d+)\)', line)
                self.wait(int(m1.group(1)) if m1 else None, int(m2.group(1)) if m2 else None)
                continue
            self._autowait(I, nowait)
            self._hazard(I)
            self._emit(I)
            if I.kind == 'vm':
                self.vm.append((set(I.defs), tag))
            elif I.kind == 'ds':
                self.lg.append((set(I.defs), tag))
            elif I.kind == 'smem':
                self.smem = True
                self.smem_regs |= set(I.defs)

    __call__ = op

    def text(self):
        return '\n'.join(self.lines) + '\n'


def lanebits(a, dst, lane, terms, tmp, const=None):
    first = True
    for lo, n, mul in terms:
        t = dst if first else tmp
        a(f"v_bfe_u32 {v(t)}, {v(lane)}, {lo}, {n}")
        if first:
            if mul != 1:
                a(f"v_mul_u32_u24 {v(dst)}, {mul}, {v(dst)}")
        elif mul & (mul - 1) == 0:
            a(f"v_lshl_add_u32 {v(dst)}, {v(tmp)}, {mul.bit_length() - 1}, {v(dst)}")
        else:
            a(f"v_mul_u32_u24 {v(tmp)}, {mul}, {v(tmp)}")
            a(f"v_add_u32 {v(dst)}, {v(dst)}, {v(tmp)}")
        first = False
    if const is not None and const != 0:
        a(f"v_add_u32 {v(dst)}, {const}, {v(dst)}")
```

```python
import numpy as np
from asmgen import Asm, v, s, lanebits
import worker as WK

def col_to_k(w, t, c):
    if t < 4:
        return 2 * (t >> 1) + (w >> 1), 2 * (w & 1) + (c >> 3), (c >> 2) & 1, 4 * ((c >> 1) & 1) + 2 * (c & 1) + (t & 1)
    return 4, w, c >> 3, c & 7

def logical_k(ga, half, sl):
    return 16 * ga + 4 * (sl >> 1) + 2 * half + (sl & 1)

def d_of(j, ga, half, sl):
    return 64 * j + 16 * ga + 8 * half + (sl if j % 5 == 4 else 4 * (sl & 1) + (sl >> 1))

def build_maps():
    rho = np.zeros((4, 5, 16), np.int64)
    pi = np.zeros((10, 64), np.int64)
    for w in range(4):
        for t in range(5):
            for c in range(16):
                rho[w, t, c] = d_of(*col_to_k(w, t, c))
    for j in range(10):
        for ga in range(4):
            for half in range(2):
                for sl in range(8):
                    pi[j, logical_k(ga, half, sl)] = d_of(j, ga, half, sl)
    eo = np.zeros((2, 64), np.int64)
    for w in range(4):
        for tau in range(2):
            for g in range(4):
                for i in range(4):
                    eo[w >> 1, logical_k(2 * (w & 1) + (g >> 1), g & 1, 4 * tau + i)] = 32 * w + 16 * tau + 4 * g + i
    return rho, pi, eo

def host_weight_frags(Wq, Wk, Wv, Wo):
    rho, pi, eo = build_maps()
    out = np.zeros((2, 32, 4, 70, 2, 64, 8), np.uint16)
    lane = np.arange(64); gb = lane >> 4; c = lane & 15
    hf = np.arange(2)[:, None, None]; sl = np.arange(8)[None, None, :]
    lk = 32 * hf + 8 * gb[None, :, None] + sl
    cc = np.broadcast_to(c[None, :, None], lk.shape)
    for x in range(2):
        for w in range(4):
            for m, W in enumerate((Wq, Wk, Wv)):
                for p in range(10):
                    for tau in range(2):
                        out[x, :, w, 20 * m + 2 * p + tau] = np.moveaxis(W[pi[(p + 5 * x) % 10][lk], :, 32 * w + 16 * tau + cc], -1, 0)
            for t in range(5):
                for u in range(2):
                    out[x, :, w, 60 + 2 * t + u] = Wo[:, eo[u][lk], 320 * x + rho[w, t][cc]]
    return out

def host_mem_frags(mem):
    out = np.zeros((10, 64, 8), mem.dtype)
    for j in range(10):
        for l in range(64):
            ga, c = l >> 4, l & 15
            r, half = 2 * (c >> 2) + (c & 1), (c >> 1) & 1
            out[j, l] = mem[r, [d_of(j, ga, half, sl) for sl in range(8)]]
    return out

def host_mem_unfrag(fr):
    mem = np.zeros((8, 640), fr.dtype)
    for j in range(10):
        for l in range(64):
            ga, c = l >> 4, l & 15
            r, half = 2 * (c >> 2) + (c & 1), (c >> 1) & 1
            mem[r, [d_of(j, ga, half, sl) for sl in range(8)]] = fr[j, l]
    return mem

def host_kv_frags(K, V):
    ns = K.shape[0] // 32
    K = K.reshape(ns, 32, 32, 128); V = V.reshape(ns, 32, 32, 128)
    out = np.zeros((ns, 32, 16, 64, 8), np.uint16)
    for l in range(64):
        g, m = l >> 4, l & 15
        for tile in range(4):
            tok = 8 * (m >> 2) + 2 * tile + (m & 1)
            tau = (m >> 1) & 1
            for u in range(2):
                e0 = 32 * (2 * u + (g >> 1)) + 16 * tau + 8 * (g & 1)
                out[:, :, tile * 2 + u, l, :] = K[:, tok, :, e0:e0 + 8]
        for w in range(4):
            for tau in range(2):
                out[:, :, 8 + 2 * w + tau, l, :] = np.moveaxis(V[:, 8 * g:8 * g + 8, :, 32 * w + 16 * tau + m], 1, -1)
    return out

L_FL = 15360
L_MEM, L_X, L_K, L_W = 0, 10240, 16384, 32768
NL = 14
LDS_BYTES = 163840
NF = 70

X_RS0, X_RS1, X_RS2, X_AG = 0, 0x10000, 0x20000, 0x28000
X_BYTES = 0x30000
H_STEP = 0x8000
BIG = 0x40000000


class Chain:
    def __init__(self, a, cfg=None):
        self.a = a
        self.cfg = dict(stamps=False, d_rs=(128, 160, 192), maxpoll=20000,
                        lds_a=None, nv=3, nset=2, p_rs=128, d_ag=320,
                        lds_c=[(60, 0), (61, 1), (62, 2), (66, 0), (68, 1), (69, 2)],
                        pause=5, d_rem=None, r_back=5)
        if cfg:
            self.cfg.update(cfg)
        if self.cfg['lds_a'] is None:
            e = 2 * self.cfg['nv']
            self.cfg['lds_a'] = [(4, 0), (8, 1), (11 + e // 3, 0), (16 + e // 3, 1), (19 + e, 0), (24 + e, 1), (28 + e, 0), (33 + e, 1)]
        self.sX, self.sH, self.sW = 19, 20, 21
        self.sOnes = 22
        self.srdW, self.srdX, self.srdKV, self.srdH = 24, 28, 32, 36
        self.sStep, self.sNst, self.sKV, self.sAGr, self.sAGz, self.sWb = 40, 41, 42, 43, 44, 45
        self.sRS, self.sT0, self.sT1, self.sPoll, self.sRW, self.sScale = 46, 47, 48, 49, 50, 51
        self.sMask = 52
        self.sKV2, self.sRS1, self.sRS2, self.sM0, self.sM1, self.sOne = 60, 61, 62, 63, 64, 65
        self.sStamp = 66
        self.sRR, self.sSh, self.sW10, self.sW8, self.sM11, self.sNoT = 90, 91, 92, 93, 94, 95
        self.sPK, self.sPV, self.sFl, self.sThr, self.sL, self.sFast = 96, 97, 98, 99, 100, 101
        for r, n in enumerate(['L16', 'LW', 'IDX', 'XW', 'XR', 'OW', 'AGW', 'RSA']):
            setattr(self, 'v' + n, r)
        self.T = 8
        self.res0 = 64
        order = self.order()
        c = self.cfg
        self.ld = [order[p] for p, _ in c['lds_a'] + c['lds_c']]
        assert len(set(self.ld)) == NL
        self.loc = {}
        r = self.res0
        for f in order:
            if f in self.ld:
                self.loc[f] = ('L', self.ld.index(f))
            else:
                self.loc[f] = ('R', r); r += 8
        assert r == 512, r

    def B(self, i):
        return self.T + 4 * i

    def order(self):
        nv = self.cfg['nv']
        o = []
        for j in range(8):
            o += [2 * j, 2 * j + 1, 20 + 2 * j, 21 + 2 * j] + ([40 + 2 * j, 41 + 2 * j] if j < nv else [])
        o += [16, 17, 18, 19, 36, 38, 37, 39]
        o += list(range(40 + 2 * nv, NF))
        return o

    def stamp(self, i):
        self.a.c(f"---- stamp {i}")
        if self.cfg['stamps'] and i in self.cfg['stamps']:
            self.a.raw(f"    s_memtime {s(self.sStamp + 2 * i, 2)}")
            self.a.smem = True

    def lds_ops(self, k, r):
        return [f"ds_read_b128 {v(r + 4 * h, 4)}, {v(self.vLW)} offset:{4096 + k * 2048 + 1024 * h}" for h in range(2)]

    def kv_ops(self, par):
        fl = self.cfg.get('kvfl', 'sc1')
        if self.cfg.get('nokv'):
            return []
        d = lambda so, h: f"buffer_load_dwordx4 {v(self.vL16)}, {s(self.srdKV, 4)}, {s(so)} offen offset:{1024 * h} {fl} lds"
        return [f"s_add_u32 m0, {s(self.sM0)}, {8192 * par}\ns_add_u32 {s(self.sKV2)}, {s(self.sKV)}, 8192",
                d(self.sKV, 0), d(self.sKV, 1),
                f"s_add_u32 m0, {s(self.sM1)}, {2048 * par}\ns_add_u32 {s(self.sKV)}, {s(self.sKV)}, {self.cfg.get('kvstride', 32 * 16384)}",
                d(self.sKV2, 0), d(self.sKV2, 1)] + \
            ([f"s_mov_b32 m0, {L_FL}\ns_nop 0", d(self.sFl, 0)] if self.cfg.get('mega') else [])

    def zero(self, r, n):
        return [f"v_mov_b64 {v(r + i, 2)}, 0" for i in range(0, n, 2)]

    def delay(self, n):
        while n >= 4:
            k = min(n // 4, 16)
            self.a(f"s_nop {k - 1}")
            n -= 4 * k

    def setup_regs(self):
        a = self.a
        T = self.T
        t0, t1, t2, t3, lane, g, c = T, T + 1, T + 2, T + 3, T + 4, T + 5, T + 6
        sW, sH, sT0, sT1 = s(self.sW), s(self.sH), s(self.sT0), s(self.sT1)
        a(f"""
        v_and_b32 {v(lane)}, 63, v0
        v_lshrrev_b32 {v(g)}, 4, {v(lane)}
        v_and_b32 {v(c)}, 15, {v(lane)}
        v_lshlrev_b32 {v(self.vL16)}, 4, {v(lane)}
        s_lshl_b32 {s(self.sM1)}, {sW}, 15
        s_add_u32 {s(self.sM1)}, {s(self.sM1)}, {L_W}
        v_add_u32 {v(self.vLW)}, {s(self.sM1)}, {v(self.vL16)}
        v_bfe_u32 {v(t0)}, {v(c)}, 1, 1
        v_mul_u32_u24 {v(t0)}, 0xAAAA, {v(t0)}
        v_add_u32 {v(self.vIDX)}, 0x4444, {v(t0)}
        """)
        a(f"""
        s_mul_i32 {sT0}, {sW}, 544
        s_add_u32 {sT0}, {sT0}, {L_X}
        v_lshrrev_b32 {v(t0)}, 1, {v(g)}
        v_and_b32 {v(t1)}, 1, {v(g)}
        v_lshlrev_b32 {v(t2)}, 3, {v(lane)}
        v_lshl_add_u32 {v(t2)}, {v(t0)}, 5, {v(t2)}
        v_add_u32 {v(self.vXW)}, {sT0}, {v(t2)}
        """)
        a(f"""
        v_mul_u32_u24 {v(t2)}, 544, {v(t0)}
        v_and_b32 {v(t3)}, 3, {v(c)}
        v_lshl_add_u32 {v(t2)}, {v(t3)}, 7, {v(t2)}
        v_bfe_u32 {v(t3)}, {v(c)}, 1, 1
        v_lshl_add_u32 {v(t2)}, {v(t3)}, 5, {v(t2)}
        v_lshl_add_u32 {v(t2)}, {v(t1)}, 6, {v(t2)}
        v_lshrrev_b32 {v(self.vXR)}, 2, {v(c)}
        v_lshl_add_u32 {v(t2)}, {v(self.vXR)}, 3, {v(t2)}
        v_add_u32 {v(self.vXR)}, {L_X}, {v(t2)}
        """)
        a(f"""
        s_lshl_b32 {sT0}, {sW}, 9
        s_add_u32 {sT0}, {sT0}, {L_X}
        v_mul_u32_u24 {v(t2)}, 2080, {v(t3)}
        v_and_b32 {v(t3)}, 13, {v(c)}
        v_lshl_add_u32 {v(t3)}, {v(t1)}, 1, {v(t3)}
        v_lshl_add_u32 {v(t3)}, {v(t0)}, 4, {v(t3)}
        v_lshl_add_u32 {v(t3)}, {v(t3)}, 4, {v(t2)}
        v_add_u32 {v(self.vOW)}, {sT0}, {v(t3)}
        """)
        a(f"""
        s_lshl_b32 {sT0}, {sW}, 14
        s_lshl_b32 {sT1}, {sH}, 6
        s_add_u32 {sT0}, {sT0}, {sT1}
        v_lshrrev_b32 {v(t0)}, 3, {v(lane)}
        v_and_b32 {v(t1)}, 7, {v(lane)}
        v_lshlrev_b32 {v(t1)}, 3, {v(t1)}
        v_lshl_add_u32 {v(t0)}, {v(t0)}, 11, {v(t1)}
        v_add_u32 {v(self.vRSA)}, {sT0}, {v(t0)}
        """)
        l2, lj = (a.newlabel('CH_s') for _ in range(2))
        sV = s(self.sNoT)
        a(f"""
        v_and_b32 {v(t0)}, 1, {v(c)}
        v_lshlrev_b32 {v(t0)}, 3, {v(t0)}
        v_lshl_add_u32 {v(t1)}, {v(g)}, 4, {v(t0)}
        v_and_b32 {v(t0)}, 2, {v(c)}
        v_lshl_add_u32 {v(t1)}, {v(t0)}, 4, {v(t1)}
        v_lshrrev_b32 {v(t3)}, 3, {v(c)}
        s_cmp_ge_u32 {sW}, 2
        s_cbranch_scc1 {l2}
        """)
        a(f"""
        s_lshl_b32 {s(self.sRS)}, {sW}, 16
        s_lshl_b32 {sT0}, {sH}, 11
        s_add_u32 {s(self.sRS)}, {s(self.sRS)}, {sT0}
        s_lshl_b32 {sT0}, {sW}, 11
        s_lshr_b32 {sT1}, {sH}, 3
        s_lshl_b32 {sT1}, {sT1}, 9
        s_add_u32 {sT0}, {sT0}, {sT1}
        s_and_b32 {sT1}, {sH}, 1
        s_lshl_b32 {sT1}, {sT1}, 8
        s_add_u32 {sT0}, {sT0}, {sT1}
        s_bfe_u32 {sT1}, {sH}, 0x20001
        s_lshl_b32 {sT1}, {sT1}, 6
        s_add_u32 {sT0}, {sT0}, {sT1}
        v_bfe_u32 {v(t2)}, {v(c)}, 2, 1
        v_or_b32 {v(t2)}, {v(t2)}, {v(t0)}
        s_mov_b32 {s(self.sSh)}, 0
        s_mov_b32 {sV}, 0
        s_branch {lj}
        {l2}:
        """)
        a(f"""
        s_and_b32 {sT1}, {sH}, 15
        s_lshl_b32 {s(self.sRS)}, {sT1}, 11
        s_add_u32 {s(self.sRS)}, {s(self.sRS)}, {X_RS2}
        s_lshl_b32 {sT0}, {sT1}, 6
        s_add_u32 {sT0}, {sT0}, 4096
        v_and_b32 {v(t2)}, 3, {v(c)}
        s_mov_b32 {s(self.sSh)}, 2
        s_and_b32 {sV}, {sH}, 16
        {lj}:
        v_add_u32 {v(t1)}, {sT0}, {v(t1)}
        v_lshl_add_u32 {v(t2)}, {v(t3)}, 2, {v(t2)}
        v_and_b32 {v(t0)}, 0x2c, {v(lane)}
        v_or_b32 {v(t0)}, {sV}, {v(t0)}
        v_cmp_eq_u32 vcc, 0, {v(t0)}
        v_mov_b32 {v(t3)}, {BIG}
        v_cndmask_b32 {v(self.vAGW)}, {v(t3)}, {v(t1)}, vcc
        """)
        for r in range(4):
            a(f"v_cmp_eq_u32 {s(self.sMask + 2 * r, 2)}, {r}, {v(t2)}")
        a(f"""
        s_lshl_b32 {sT0}, {s(self.sX)}, 5
        s_add_u32 {sT0}, {sT0}, {sH}
        s_lshl_b32 {sT0}, {sT0}, 2
        s_add_u32 {sT0}, {sT0}, {sW}
        s_mul_i32 {s(self.sWb)}, {sT0}, {NF * 2048}
        s_lshl_b32 {s(self.sM0)}, {sW}, 11
        s_add_u32 {s(self.sM0)}, {s(self.sM0)}, {L_K}
        s_mov_b32 {s(self.sScale)}, {hex(int(np.float32(128 ** -0.5 * np.log2(np.e)).view(np.uint32)))}
        s_mov_b32 {s(self.sRS1)}, {X_RS1}
        s_lshl_b32 {sT0}, {sW}, 13
        s_lshl_b32 {sT1}, {sH}, 6
        s_add_u32 {sT0}, {sT0}, {sT1}
        s_add_u32 {s(self.sRS2)}, {sT0}, {X_RS2}
        s_mov_b32 {s(self.sM11)}, 0xfffff800
        s_mov_b32 {s(self.sOne)}, 0x3f80
        s_mov_b32 {s(self.sOnes)}, 0x3f803f80
        s_mov_b32 {s(self.sOnes + 1)}, 0x3f803f80
        s_lshl_b32 {s(self.sW10)}, {sW}, 10
        s_lshl_b32 {s(self.sW8)}, {sW}, 8
        s_add_u32 {s(self.sW8)}, {s(self.sW8)}, 4096
        """)

    def load_weights(self):
        a = self.a
        n = 0
        for f in range(NF):
            kind, x = self.loc[f]
            a(f"s_add_u32 {s(self.sT0)}, {s(self.sWb)}, {f * 2048}")
            if kind == 'R':
                a(f"buffer_load_dwordx4 {v(x, 4)}, {v(self.vL16)}, {s(self.srdW, 4)}, {s(self.sT0)} offen")
                a(f"buffer_load_dwordx4 {v(x + 4, 4)}, {v(self.vL16)}, {s(self.srdW, 4)}, {s(self.sT0)} offen offset:1024")
            else:
                a(f"s_add_u32 m0, {s(self.sM1)}, {4096 + x * 2048}")
                a(f"buffer_load_dwordx4 {v(self.vL16)}, {s(self.srdW, 4)}, {s(self.sT0)} offen lds")
                a(f"buffer_load_dwordx4 {v(self.vL16)}, {s(self.srdW, 4)}, {s(self.sT0)} offen offset:1024 lds")
            n += 2
            if n % 16 == 0:
                a.wait(vm=40)
        a.wait(vm=0)

    def gregs(self, remote):
        B = self.B
        return (B(12), B(13)) if remote else (B(4), B(5))

    def gaddr(self):
        B = self.B
        return [f"v_add_u32 {v(B(13) + 1)}, {s(self.sW10)}, {v(self.vL16)}",
                f"v_lshrrev_b32 {v(B(13) + 2)}, 2, {v(self.vL16)}",
                f"v_add_u32 {v(B(13) + 2)}, {s(self.sW8)}, {v(B(13) + 2)}"]

    def gload(self, remote):
        B = self.B
        g4, g1 = self.gregs(remote)
        srd, so = (self.srdH, self.sRR) if remote else (self.srdX, self.sAGr)
        return [f"buffer_load_dwordx4 {v(g4, 4)}, {v(B(13) + 1)}, {s(srd, 4)}, {s(so)} offen sc1",
                f"buffer_load_dword {v(g1)}, {v(B(13) + 2)}, {s(srd, 4)}, {s(so)} offen sc1"]

    def gwrite(self, remote):
        B = self.B
        g4, g1 = self.gregs(remote)
        o = L_MEM + 5120 * remote
        return [f"ds_write_b128 {v(B(13) + 1)}, {v(g4, 4)} offset:{o}", f"ds_write_b32 {v(B(13) + 2)}, {v(g1)} offset:{o}"]

    def gcheck(self, remote):
        B = self.B
        g4, g1 = self.gregs(remote)
        return [f"v_max3_u32 {v(B(13) + 3)}, {v(g4)}, {v(g4 + 2)}, {v(g1)}", f"v_cmp_eq_u32 vcc, -1, {v(B(13) + 3)}"]

    def pre_loop(self):
        a, B = self.a, self.B
        for o in self.kv_ops(0) + self.gaddr():
            a(o)
        a(f"s_xor_b32 {s(self.sT0)}, {s(self.sRR)}, 0x4000")
        for o in self.gload(0):
            a(o.replace(s(self.srdX, 4), s(self.srdH, 4)).replace(f", {s(self.sAGr)} ", f", {s(self.sT0)} "))
        for o in self.gload(1) + self.gwrite(0) + self.zero(B(0), 16) + self.zero(B(10), 8):
            a(o)
        a(f"s_mov_b32 {s(self.sPoll)}, 0")
        a.wait(vm=0, lg=0)

    def body(self, par, l_next, l_fail, l_exit):
        a, B, cfg = self.a, self.B, self.cfg
        L16, IDX = v(self.vL16), v(self.vIDX)
        tag = str(1 - par)
        lf = self.lf
        VA = B(10)
        lds_a, lds_c = cfg['lds_a'], cfg['lds_c']
        LSA, LSC = [B(6), B(8)], [B(10), B(12), B(7)]
        lsreg = [LSA[sl] for _, sl in lds_a] + [LSC[sl] for _, sl in lds_c]
        na = len(lds_a)
        mq = []
        tail = []

        def nxt(tab, k):
            for k2 in range(k + 1, len(tab)):
                if tab[k2][1] == tab[k][1]:
                    return k2
            return None

        def wreg(f):
            kind, x = self.loc[f]
            return x if kind == 'R' else lsreg[x]

        def sm(acc, ar, f, valu=(), nmem=2, pre=None):
            kind, x = self.loc[f]
            busy = {('v', r) for r in list(range(ar, ar + 4)) + list(range(wreg(f), wreg(f) + 8))}
            a(f"v_smfmac_f32_16x16x64_bf16 {v(acc, 4)}, {v(ar, 4)}, {v(wreg(f), 8)}, {IDX}")
            if kind == 'L':
                k = nxt(lds_a, x) if x < na else nxt(lds_c, x - na)
                if k is not None:
                    k += 0 if x < na else na
                    n = 1 if mq and 'offset' in mq[0] and mq[0].startswith('ds_read_b128') and L16 + ' ' in mq[0] else 0
                    mq[n:n] = self.lds_ops(k, lsreg[k])
            if pre:
                a.need(pre)
            drain(nmem)
            for o in valu:
                a(o)

        def drain(n=99):
            for _ in range(min(n, len(mq))):
                a(mq.pop(0))

        def aread(r, j):
            return f"ds_read_b128 {v(r, 4)}, {L16} offset:{L_MEM + 1024 * j}"

        def kxread(r, i):
            return f"ds_read_b128 {v(r, 4)}, {L16} offset:{L_K + 8192 * par + 1024 * i}"

        def add(r, x, y):
            return f"v_add_f32 {v(r)}, {v(x)}, {v(y)}"

        def cvt(r, x, y):
            return f"v_cvt_pk_bf16_f32 {v(r)}, {v(x)}, {v(y)}"

        def hsum(r):
            return [add(r, r, r + 2), add(r + 1, r + 1, r + 3)]

        def pollcount(inc=1):
            return [f"s_add_u32 {s(self.sPoll)}, {s(self.sPoll)}, {inc}", f"s_cmp_gt_u32 {s(self.sPoll)}, {cfg['maxpoll'] * inc}",
                    f"s_cbranch_scc1 {l_fail}"]

        def retry(remote, l_re, l_back):
            tail.extend([l_re + ':'] + self.gload(remote) + pollcount() + ["s_waitcnt vmcnt(0)"] + self.gcheck(remote) +
                        [f"s_cbranch_vccnz {l_re}"] + self.gwrite(remote) + ["s_waitcnt lgkmcnt(0)", f"s_branch {l_back}"])

        a.wait(lg=0)
        a("s_barrier")
        self.stamp(0)
        a(aread(B(4), 0)); a(aread(B(5), 1))
        for sl in range(2):
            k = [kk for kk in range(na) if lds_a[kk][1] == sl][0]
            mq.extend(self.lds_ops(k, lsreg[k]))
        drain(2)
        pause, nv = cfg['pause'], cfg['nv']
        vj = list(range(nv, 10))
        nvl = len(vj)
        AV = {i: [B(5), B(4), B(6)][i % 3] for i in range(pause)}
        for i in range(pause, nvl):
            AV[i] = [B(13), B(7), B(5)][(i - pause) % 3]
        vread_a = lambda i: aread(AV[i], vj[i])
        l_re, l_back = a.newlabel('CH_re'), a.newlabel('CH_bk')
        retry(1, l_re, l_back)
        kvq = []
        seq = [(j, m) for j in range(8) for m in range(6 if j < nv else 4)]
        p_bar = max(p for p, (j, m) in enumerate(seq) if j == 3)
        r_at = p_bar - cfg['r_back']
        for pos, (j, m) in enumerate(seq):
            f = (2 * j, 2 * j + 1, 20 + 2 * j, 21 + 2 * j, 40 + 2 * j, 41 + 2 * j)[m]
            acc = B(m) if m < 4 else VA + 4 * (m - 4)
            last = pos + 1 == len(seq) or seq[pos + 1][0] != j
            ab = B(4 + j % 2)
            if last and j != 3:
                mq[0:0] = [aread(ab, j + 2) if j < 7 else vread_a(0)]
            if j == 7 and m == 0:
                mq.append(aread(B(6), 9))
            if pos == r_at:
                sm(acc, ab, f, nmem=1 if last else 0)
                a(self.gwrite(1)[0], tag='rem')
            elif pos == r_at + 1:
                sm(acc, ab, f, nmem=1 if last else 0)
                a(self.gwrite(1)[1], tag='rem')
                a(self.gcheck(1)[0])
            elif pos == r_at + 2:
                sm(acc, ab, f, self.gcheck(1)[1:], nmem=1)
            elif pos == p_bar - 1:
                sm(acc, ab, f, [f"s_cbranch_vccnz {l_re}", l_back + ':'], nmem=0)
            elif pos == p_bar:
                sm(acc, ab, f, nmem=0)
                a.wait_tag('rem')
                a("s_barrier")
                self.stamp(9)
                a(aread(B(5), 5))
                kvq.extend(self.kv_ops(1 - par))
            else:
                if kvq and m == cfg.get('kv_m', 2):
                    if kvq[0].startswith('s_'):
                        mq.append(kvq.pop(0))
                    mq.append(kvq.pop(0))
                sm(acc, ab, f)
        assert cfg['r_back'] >= 4
        q0, q1, k0, k1 = B(0), B(1), B(2), B(3)
        mq.extend([kxread(B(12), 2), kxread(B(13), 3)])
        sm(q0, B(4), 16)
        sm(q1, B(4), 17, pre=v(B(6), 4))
        mq.extend([kxread(B(8), 0), kxread(B(9), 1)])
        sm(q0, B(6), 18)
        mq.extend(kvq)
        sm(q1, B(6), 19)
        sm(k0, B(4), 36, hsum(q0)[:1])
        sm(k0, B(6), 38, hsum(q0)[1:] + hsum(q1)[:1])
        mq[0:0] = [vread_a(1)]
        sm(k1, B(4), 37, hsum(q1)[1:] + [cvt(q0, q0, q0 + 1)], nmem=1)
        mq[0:0] = [vread_a(2)]
        sm(k1, B(6), 39, [cvt(q0 + 1, q1, q1 + 1)] + hsum(k0), nmem=1, pre=v(AV[0], 4))
        self.stamp(1)
        vq = [(i, tau) for i in range(nvl) for tau in range(2)]
        nlate = 2 * (nvl - pause)

        def vstep(valu=(), nmem=2):
            if not vq:
                drain(nmem)
                for o in valu:
                    a(o)
                return
            i, tau = vq.pop(0)
            if tau == 1 and i + 3 < nvl and (i + 3 < pause or i >= pause):
                mq[0:0] = [vread_a(i + 3)]
            pre = None
            if vq and len(vq) != nlate:
                pre = v(AV[vq[0][0]], 4)
            sm(VA + 4 * tau, AV[i], 40 + 2 * vj[i] + tau, valu, nmem, pre)

        vstep(nmem=0)
        a(f"ds_write_b64 {v(self.vXW)}, {v(q0, 2)}", tag='x1')
        for o in [cvt(q0 + 2, k0, k0 + 1)] + hsum(k1) + [cvt(q0 + 3, k1, k1 + 1)]:
            a(o)
        vstep(nmem=0)
        a(f"ds_write_b64 {v(self.vXW)}, {v(q0 + 2, 2)} offset:2176", tag='x1')
        mega = cfg.get('mega')
        for i in range(cfg.get('v_prebar', 3)):
            if mega and i == 0:
                vstep([f"v_lshrrev_b32 {v(q1)}, 1, {L16}"])
            elif mega and i == 1:
                vstep([f"v_permlane16_swap_b32 {v(q0 + 2)}, {v(q0 + 3)}"])
            elif mega and i == 2:
                vstep([f"buffer_store_dwordx2 {v(q0 + 2, 2)}, {v(q1)}, {s(self.srdKV, 4)}, {s(self.sPK)} offen sc1"])
            else:
                vstep()
        a.wait_tag('x1')
        a("s_barrier")
        self.stamp(2)
        Q, K = [B(1), B(2)], [B(3), B(7)]
        tr = [f"ds_read_b64_tr_b16 {v(R[u] + 2 * hi, 2)}, {v(self.vXR)} offset:{o + u * 1088 + hi * 32}"
              for R, o in ((Q, 0), (K, 2176)) for u in range(2) for hi in range(2)]
        a(tr[0]); a(tr[1])
        mq[0:0] = tr[2:]
        while len(vq) > nlate:
            j, tau = vq[0]
            if tau == 1 and j + 3 >= pause:
                mq.append(kxread(AV[j], {B(4): 4, B(5): 5, B(6): 6}[AV[j]]))
            vstep(nmem=3)
        drain()
        P, PM, VM, O = B(1), B(2), B(3) + 2, [B(6), B(9)]
        vread = lambda t: f"ds_read_b128 {v(O[t], 4)}, {v(self.vLW)} offset:{2048 * par + 1024 * t}"
        tiles = [((B(8), B(9)), B(0)), ((B(12), B(13)), B(8)), ((B(3), B(7)), B(12)), ((B(4), B(5)), B(3)), ((B(6), B(9)), B(4))]
        after = {1: [kxread(B(9), 7)]}
        for i in range(pause, min(pause + 3, nvl)):
            after[3 + 2 * (i - pause)] = [vread_a(i)]
        M, M2 = B(0) + 2, B(0) + 3

        def dadd(acc, r):
            return f"v_add_f32_dpp {v(acc + r)}, {v(acc + 2 + r)}, {v(acc + r)} quad_perm:[2,3,2,3] row_mask:0xf bank_mask:0xf"

        def mx(t):
            acc = tiles[t][1]
            return f"v_max_f32 {v(M)}, {v(acc)}, {v(acc + 1)}" if t == 0 else f"v_max3_f32 {v(M)}, {v(M)}, {v(acc)}, {v(acc + 1)}"
        for i in range(10):
            t, u = i >> 1, i & 1
            A, acc = tiles[t]
            a(f"v_mfma_f32_16x16x32_bf16 {v(acc, 4)}, {v(A[u], 4)}, {v(Q[u], 4)}, {'0' if u == 0 else v(acc, 4)}")
            a.need(v(tiles[(i + 1) >> 1][0][(i + 1) & 1], 4) if i < 9 else v(AV.get(pause, B(0)), 4))
            for o in after.get(i, []):
                a(o)
            if i >= 3 and u == 1:
                a(dadd(tiles[t - 1][1], 0))
            if i >= 4 and u == 0:
                a(dadd(tiles[t - 2][1], 1)); a(mx(t - 2))
        self.stamp(3)
        ONE, LA = B(5), B(13)
        a(dadd(tiles[3][1], 1))
        mq.extend([vread(0), vread(1)])
        vstep([mx(3), f"v_mov_b32 {v(PM + 1)}, 0"], nmem=1)
        a(dadd(tiles[4][1], 0)); a(dadd(tiles[4][1], 1)); a(mx(4))
        a(f"v_mov_b32 {v(M2)}, {v(M)}")
        vstep(nmem=1)
        a(f"v_permlane32_swap_b32 {v(M)}, {v(M2)}")
        a(f"v_max_f32 {v(M)}, {v(M)}, {v(M2)}")
        a(f"v_mov_b32 {v(M2)}, {v(M)}")
        vstep(nmem=0)
        a("s_barrier")
        a(f"v_permlane16_swap_b32 {v(M)}, {v(M2)}")
        a(f"v_max_f32 {v(M)}, {v(M)}, {v(M2)}")
        a(f"v_mul_f32 {v(M)}, {s(self.sScale)}, {v(M)}")
        xs = [tiles[t][1] for t in (0, 1, 3, 4)]
        sc = [r + i for r in xs + [tiles[2][1]] for i in range(2)]
        fma = lambda r: f"v_fma_f32 {v(r)}, {v(r)}, {s(self.sScale)}, -{v(M)}"
        ex = lambda r: f"v_exp_f32 {v(r)}, {v(r)}"
        for i in range(9):
            a(fma(sc[i]))
            if i > 0:
                a(ex(sc[i - 1]))
            if vq or mq:
                vstep(nmem=1)
            if i in (3, 5, 7):
                a(cvt(P + (i - 3) // 2, sc[i - 3], sc[i - 2]))
        assert not vq and not mq
        a(f"v_mov_b64 {v(ONE, 2)}, {s(self.sOnes, 2)}")
        a(f"v_mov_b64 {v(ONE + 2, 2)}, {s(self.sOnes, 2)}")
        a(cvt(P + 3, sc[6], sc[7]))
        a(fma(sc[9]))
        a(ex(sc[8]))
        a(f"v_mfma_f32_16x16x32_bf16 {v(LA, 4)}, {v(ONE, 4)}, {v(P, 4)}, 0")
        a(ex(sc[9]))
        a(f"v_mfma_f32_16x16x32_bf16 {v(O[0], 4)}, {v(O[0], 4)}, {v(P, 4)}, 0")
        a(cvt(PM, sc[8], sc[9])); a(hsum(VA)[0])
        a(f"v_mfma_f32_16x16x32_bf16 {v(O[1], 4)}, {v(O[1], 4)}, {v(P, 4)}, 0")
        a(hsum(VA)[1]); a(hsum(VA + 4)[0])
        a(f"v_mfma_f32_16x16x16_bf16 {v(LA, 4)}, {v(ONE, 2)}, {v(PM, 2)}, {v(LA, 4)}")
        for o in [hsum(VA + 4)[1], cvt(VM, VA, VA + 1), cvt(VM + 1, VA + 4, VA + 5), f"v_mov_b32 {v(PM + 2)}, 0", f"v_mov_b32 {v(PM + 3)}, {v(PM)}"]:
            a(o)
        first_c = lambda sl: self.lds_ops(na + [kk for kk in range(len(lds_c)) if lds_c[kk][1] == sl][0], LSC[sl])
        a(f"v_mfma_f32_16x16x16_bf16 {v(O[0], 4)}, {v(VM, 2)}, {v(PM, 2)}, {v(O[0], 4)}")
        for o in first_c(0):
            a(o)
        a(f"v_mfma_f32_16x16x16_bf16 {v(O[1], 4)}, {v(VM, 2)}, {v(PM + 2, 2)}, {v(O[1], 4)}")
        for o in first_c(2):
            a(o)
        mq.extend(first_c(1))
        WA = [B(2), B(3), B(4), B(5), B(0)]
        Z = B(1)
        a(f"v_rcp_f32 {v(M)}, {v(LA)}")
        a(f"v_mov_b64 {v(Z, 2)}, 0")
        if mega:
            a(f"v_lshrrev_b32 {v(Z + 2)}, 1, {L16}")
            a(f"v_permlane16_swap_b32 {v(VM)}, {v(VM + 1)}")
        for i in range(4):
            r = O[i >> 1] + 2 * (i & 1)
            a(f"v_pk_mul_f32 {v(r, 2)}, {v(r, 2)}, {v(M, 2)} op_sel_hi:[1,0]")
            if i & 1:
                a(cvt(O[0] + i - 1, r - 2, r - 1)); a(cvt(O[0] + i, r, r + 1))
        zm = [f"v_mfma_f32_16x16x16_bf16 {v(r, 4)}, {v(Z, 2)}, {v(Z, 2)}, 0" for r in (WA + WA[2:])[:cfg.get('nz', 8)]]
        a(zm.pop(0))
        a(f"ds_write_b128 {v(self.vOW)}, {v(O[0], 4)}", tag='x2')
        if mega:
            a(f"buffer_store_dwordx2 {v(VM, 2)}, {v(Z + 2)}, {s(self.srdKV, 4)}, {s(self.sPV)} offen sc1")
            if par == 1:
                a(f"s_cmp_eq_u32 {s(self.sStep)}, 63")
                a(f"s_cbranch_scc1 {l_exit}")
        self.stamp(4)
        for _ in range(cfg.get('z_prebar', 4)):
            a(zm.pop(0))
            drain(2)
        a.wait_tag('x2')
        a("s_barrier")
        a(f"ds_read_b128 {v(O[0], 4)}, {L16} offset:{L_X}")
        a(f"ds_read_b128 {v(O[1], 4)}, {L16} offset:{L_X + 1024}")
        za = [f"v_lshlrev_b32 {v(Z + 3)}, 3, {L16}", f"v_bfe_u32 {v(Z + 2)}, {L16}, 2, 6",
              f"v_and_or_b32 {v(Z + 2)}, {v(Z + 3)}, {s(self.sM11)}, {v(Z + 2)}"]
        while zm or za:
            if zm:
                a(zm.pop(0))
            if za:
                a(za.pop(0))
        self.stamp(5)
        vw = []
        for t in range(5):
            r = WA[t]; e = 2 * t + 3
            vw += [(e, o) for o in hsum(r)]
            if t & 1:
                rp = WA[t - 1]
                vw += [(e, cvt(rp, rp, r)), (e, cvt(rp + 1, rp + 1, r + 1)),
                       (e, f"v_and_or_b32 {v(rp)}, {v(rp)}, -2, {tag}"),
                       (e, f"buffer_store_dwordx2 {v(rp, 2)}, {v(self.vRSA)}, {s(self.srdX, 4)}, {'0' if t == 1 else s(self.sRS1)} offen{lf}")]
            if t == 4:
                vw += [(e, cvt(r, r, r + 1)), (e, f"v_and_or_b32 {v(r)}, {v(r)}, -2, {tag}"),
                       (e, f"buffer_store_dword {v(r)}, {v(Z + 2)}, {s(self.srdX, 4)}, {s(self.sRS2)} offen{lf}")]
        per = cfg.get('wo_valu', 2)
        for i in range(10):
            t, u = i >> 1, i & 1
            st_ = vw.pop(0)[1] if vw and vw[0][1].startswith('buffer') else None
            va = []
            while vw and vw[0][0] <= i and len(va) < per and not vw[0][1].startswith('buffer'):
                va.append(vw.pop(0)[1])
            pre = v(wreg(61 + i), 8) if 0 < i < 9 else None
            if st_:
                sm(WA[t], O[u], 60 + i, [st_], nmem=0, pre=pre)
                drain(1)
                for o in va:
                    a(o)
            else:
                sm(WA[t], O[u], 60 + i, va, pre=pre)
        drain()
        a(f"s_cmp_eq_u32 {s(self.sW)}, 3")
        for _, o in vw:
            a(o)
        self.stamp(6)
        RB, SEL, RA, CK = B(6), B(8), B(9), B(12)
        l_w3, l_j, l_p, l_c = (a.newlabel('CH_h') for _ in range(4))
        a(f"s_cbranch_scc1 {l_w3}")
        st0 = a.state()

        def chores():
            if cfg.get('bench') and par == 0:
                lb = a.newlabel('CH_b')
                a.raw(f"    s_cmp_lg_u32 {s(self.sStep)}, 2\n    s_cbranch_scc1 {lb}\n    s_memtime s[10:11]\n    s_mov_b32 s15, 0\n{lb}:")
                a.raw(f"    s_cmp_lg_u32 {s(self.sStep)}, 62\n    s_cbranch_scc1 {lb}x\n    s_memtime s[12:13]\n{lb}x:")
            if cfg.get('abs'):
                a(f"s_add_u32 s15, s15, {s(self.sPoll)}")
            a(f"s_mov_b32 {s(self.sAGz)}, {s(self.sAGr)}")
            a(f"s_add_u32 {s(self.sAGr)}, {s(self.sAGr)}, 0x2000")
            a(f"s_and_b32 {s(self.sAGr)}, {s(self.sAGr)}, 0x7fff")
            a(f"s_add_u32 {s(self.sAGr)}, {s(self.sAGr)}, {X_AG}")
            a(f"s_mov_b32 {s(self.sPoll)}, 0")
            a(f"s_add_u32 {s(self.sStep)}, {s(self.sStep)}, 1")
            a(f"s_add_u32 {s(self.sRR)}, {s(self.sRR)}, {H_STEP}")
            if mega:
                a(f"s_add_u32 {s(self.sPK)}, {s(self.sPK)}, {32 * 4096}")
                a(f"s_add_u32 {s(self.sPV)}, {s(self.sPV)}, {32 * 4096}")

        a(f"v_lshrrev_b32 {v(CK)}, {s(self.sSh)}, {L16}")
        a(f"v_and_b32 {v(CK)}, 16, {v(CK)}")
        a(f"v_lshlrev_b32_e64 {v(CK)}, {v(CK)}, {s(self.sOne)}")
        for r in range(4):
            a(f"v_cndmask_b32 {v(SEL + r)}, 0, {v(CK)}, {s(self.sMask + 2 * r, 2)}")
        a(f"v_mov_b64 {v(CK + 2, 2)}, -1")
        chores()
        l_nt, l_x0 = a.newlabel('CH_nt'), a.newlabel('CH_x0')
        tail.extend([l_nt + ':'] + self.gaddr() + self.zero(B(0), 16) + self.zero(VA, 8) + ["s_waitcnt vmcnt(0)", f"s_branch {l_x0}"])
        a(f"s_cmp_lg_u32 {s(self.sNoT)}, 0")
        a(f"s_cbranch_scc1 {l_nt}")
        d_rs = cfg['d_rs']
        self.delay(d_rs[0] - 72)
        lx = a.newlabel('CH_d')
        for w in range(2):
            if d_rs[w + 1] > d_rs[w]:
                a(f"s_cmp_le_u32 {s(self.sW)}, {w}")
                a(f"s_cbranch_scc1 {lx}")
                self.delay(d_rs[w + 1] - d_rs[w])
        a.label(lx)
        nset = cfg['nset']
        sets = [B(6), B(4), B(2)][:nset]
        ld = lambda R: [f"buffer_load_dwordx4 {v(R + 4 * i, 4)}, {L16}, {s(self.srdX, 4)}, {s(self.sRS)} offen offset:{1024 * i} sc1" for i in range(2)]
        fill = self.gaddr() + self.zero(B(0), 8) + self.zero(VA, 8)
        for k, R in enumerate(sets):
            for o in ld(R):
                a(o)
            if k == 0:
                for o in fill:
                    a(o)
                a(f"s_cmp_eq_u32 {s(self.sW)}, 2")
                a(f"s_cselect_b32 {s(self.sT0)}, {1 if par else 0}, {0 if par else 1}")
            if k + 1 < nset:
                self.delay(cfg['p_rs'] - (64 if k == 0 else 8))
        o3 = '0x80' if par == 0 else '0xfe'
        t1, t2 = CK, CK + 1

        def check(R):
            return [f"s_waitcnt vmcnt({2 * nset - 1})",
                    f"v_mfma_f32_16x16x32_bf16 {v(RA, 4)}, {v(SEL, 4)}, {v(R, 4)}, 0",
                    f"s_waitcnt vmcnt({2 * nset - 2})",
                    f"v_mfma_f32_16x16x32_bf16 {v(RA, 4)}, {v(SEL, 4)}, {v(R + 4, 4)}, {v(RA, 4)}",
                    f"v_bitop3_b32 {v(t1)}, {v(R + 1)}, {v(R + 3)}, {v(R + 5)} bitop3:{o3}",
                    f"v_bitop3_b32 {v(t2)}, {v(R)}, {v(R + 2)}, {v(R + 4)} bitop3:{o3}",
                    f"v_bitop3_b32 {v(t1)}, {v(t1)}, {v(R + 7)}, {s(self.sT0)} bitop3:{'0xea' if par == 0 else '0xa8'}",
                    f"v_bitop3_b32 {v(t1)}, {v(t1)}, {v(t2)}, {v(R + 6)} bitop3:{o3}",
                    f"v_and_b32 {v(t1)}, 1, {v(t1)}",
                    f"v_cmp_ne_u32 vcc, {tag}, {v(t1)}"]
        l_ok = a.newlabel('CH_ok')
        a.label(l_c)
        for o in check(sets[0]):
            a(o)
        if not cfg.get('late_br', 1):
            a(f"s_cbranch_vccnz {l_p}")
        a.label(l_ok)
        tail.append(l_p + ':')
        for k in range(nset):
            tail.extend(ld(sets[k]))
            if k + 1 < nset:
                tail.extend(check(sets[k + 1]) + [f"s_cbranch_vccz {l_ok}"])
        tail.extend(pollcount() + [f"s_branch {l_c}"])
        for rr in (8, 4):
            for i in range(4):
                a(f"v_add_f32_dpp {v(RA + i)}, {v(RA + i)}, {v(RA + i)} row_ror:{rr} row_mask:0xf bank_mask:0xf")
        a(cvt(CK, RA, RA + 1)); a(cvt(CK + 1, RA + 2, RA + 3))
        a(f"v_min_u32 {v(CK)}, -2, {v(CK)}")
        a(f"v_min_u32 {v(CK + 1)}, -2, {v(CK + 1)}")
        if cfg.get('late_br', 1):
            a(f"s_cbranch_vccnz {l_p}")
        a(f"buffer_store_dwordx2 {v(CK, 2)}, {v(self.vAGW)}, {s(self.srdX, 4)}, {s(self.sAGr)} offen{lf}")
        pub = f"buffer_store_dwordx2 {v(CK, 2)}, {v(self.vAGW)}, {s(self.srdH, 4)}, {s(self.sRW)} offen sc1"
        if not cfg.get('sc1_late', 1):
            a(pub)
        a.label(l_x0)
        self.stamp(7)
        a("s_barrier")
        if cfg.get('sc1_late', 1):
            a(pub)
        a(f"buffer_store_dwordx2 {v(CK + 2, 2)}, {v(self.vAGW)}, {s(self.srdX, 4)}, {s(self.sAGz)} offen{lf}")
        a(f"s_add_u32 {s(self.sRW)}, {s(self.sRW)}, {H_STEP}")
        for o in self.zero(B(2), 8):
            a(o)
        self.delay(cfg['d_ag'] - 48)
        a(f"s_branch {l_j}")
        a.set_state(st0)
        a.label(l_w3)
        for o in self.gaddr() + self.zero(VA, 8):
            a(o)
        chores()
        for i in range(max(1, cfg.get('warm', 8))):
            a(f"v_mfma_f32_32x32x2_f32 {v(B(0), 16)}, {v(VA)}, {v(VA)}, {'0' if i == 0 else v(B(0), 16)}")
            if mega and i == cfg.get('warm', 8) - 2:
                l_fp, l_fb = a.newlabel('CH_fp'), a.newlabel('CH_fb')
                a.wait(vm=0)
                a(f"v_and_b32 {v(SEL)}, 48, {L16}")
                a(f"ds_read_b32 {v(SEL + 1)}, {v(SEL)} offset:{L_FL}")
                a(f"s_add_u32 {s(self.sT0)}, {s(self.sStep)}, 2")
                a(f"s_min_u32 {s(self.sT0)}, {s(self.sT0)}, 64")
                a(f"s_add_u32 {s(self.sT0)}, {s(self.sT0)}, {s(self.sThr)}")
                a.label(l_fb)
                a(f"v_cmp_gt_u32 vcc, {s(self.sT0)}, {v(SEL + 1)}")
                a(f"s_cbranch_vccnz {l_fp}")
                tail.extend([l_fp + ':', f"buffer_load_dword {v(SEL + 1)}, {v(SEL)}, {s(self.srdKV, 4)}, {s(self.sFl)} offen sc1"] +
                            pollcount() + ["s_waitcnt vmcnt(0)", f"s_branch {l_fb}"])
        a("s_barrier")
        self.stamp(7)
        self.delay(cfg['d_ag'])
        a.label(l_j)
        a.vm = []
        for o in self.gload(0):
            a(o)
        if cfg['d_rem'] is not None:
            self.delay(cfg['d_rem'])
            for o in self.gload(1):
                a(o)
        l_re, l_back = a.newlabel('CH_re'), a.newlabel('CH_bk')
        retry(0, l_re, l_back)
        for o in self.gwrite(0) + self.gcheck(0):
            a(o)
        a(f"s_cbranch_vccnz {l_re}")
        a.label(l_back)
        if cfg.get('rem2', 1):
            for o in self.gload(1):
                a(o)
        self.stamp(8)
        if mega:
            if par == 1:
                a(f"s_branch {l_next}")
        else:
            a(f"s_cmp_lt_u32 {s(self.sStep)}, {s(self.sNst)}")
            if par == 0:
                a(f"s_cbranch_scc0 {l_exit}")
            else:
                a(f"s_cbranch_scc1 {l_next}")
                a(f"s_branch {l_exit}")
        self.tail += tail

    def loop(self, l_fail, lf=''):
        a = self.a
        self.lf = lf
        keep = a.lines
        a.lines = []
        a.forget()
        self.tail = []
        self.body(1, 'X', l_fail, 'Y')
        st = a.state()
        a.lines = keep
        a.set_state(st)
        self.tail = []
        l_top, l_exit = a.newlabel('CH_top'), a.newlabel('CH_exit')
        a.raw(".p2align 6")
        a.label(l_top)
        n0 = a.nops
        i0 = len(a.lines)
        self.body(0, None, l_fail, l_exit)
        self.loop_lines = a.lines[i0:]
        self.body(1, l_top, l_fail, l_exit)
        self.loop_nops = a.nops - n0
        for o in self.tail:
            a.raw(o if o.endswith(':') else '    ' + o)
        a.label(l_exit)

    def srd(self, r, karg, nbytes):
        a = self.a
        a(f"s_load_dwordx2 {s(r, 2)}, s[0:1], {karg}")
        a(f"s_mov_b32 {s(r + 2)}, {nbytes}")
        a(f"s_mov_b32 {s(r + 3)}, 0x20000")

    def load_raw(self):
        a, B = self.a, self.B
        ln, gq, go, go4, ta, tb, to, to4, ad, tmp = (B(0) + i for i in range(10))
        TMP = B(4)
        rq = [4, 8, 12, self.srdW]
        for m in range(3):
            self.srd(rq[m], 40 + 8 * m, 640 * 8192)
        self.srd(self.srdW, 64, 4096 * 1280)
        a(f"v_lshrrev_b32 {v(ln)}, 4, {v(self.vL16)}")
        lanebits(a, gq, ln, [(2, 4, 8192), (0, 2, 16)], tmp)
        lanebits(a, go, ln, [(2, 4, 1280), (0, 2, 16)], tmp)
        lanebits(a, go4, ln, [(1, 5, 1280), (0, 1, 16)], tmp)
        lanebits(a, ta, ln, [(5, 1, 16 * 64), (3, 1, 8 * 64), (2, 1, 4 * 64), (4, 1, 2 * 64), (0, 2, 8)], tmp)
        lanebits(a, tb, ln, [(5, 1, 16 * 64), (3, 1, 8 * 64), (4, 1, 4 * 64), (2, 1, 64), (0, 2, 8)], tmp)
        lanebits(a, to, ln, [(4, 1, 16 * 64), (5, 1, 8 * 64), (3, 1, 4 * 64), (2, 1, 64), (0, 2, 16)], tmp)
        lanebits(a, to4, ln, [(4, 1, 16 * 32), (5, 1, 8 * 32), (3, 1, 4 * 32), (2, 1, 32), (0, 2, 8)], tmp)
        sQ0, sQ1, sO, sO4, sSh = (self.sStamp + i for i in range(5))
        sT0, sT1, sW, sH, sX = s(self.sT0), s(self.sT1), s(self.sW), s(self.sH), s(self.sX)
        a(f"""
        s_lshl_b32 {sT0}, {sH}, 8
        s_lshl_b32 {sT1}, {sW}, 6
        s_add_u32 {sT0}, {sT0}, {sT1}
        s_mul_i32 {sT1}, {sX}, {320 * 8192}
        s_add_u32 {s(sQ0)}, {sT0}, {sT1}
        s_sub_u32 {s(sQ1)}, {sT0}, {sT1}
        s_add_u32 {s(sQ1)}, {s(sQ1)}, {320 * 8192}
        s_mul_i32 {sT0}, {sH}, {128 * 1280}
        s_mul_i32 {sT1}, {sX}, 640
        s_add_u32 {sT0}, {sT0}, {sT1}
        s_lshl_b32 {sT1}, {sW}, 6
        s_add_u32 {s(sO)}, {sT0}, {sT1}
        s_lshl_b32 {sT1}, {sW}, 5
        s_add_u32 {s(sO4)}, {sT0}, {sT1}
        s_add_u32 {s(sO4)}, {s(sO4)}, 512
        s_lshl_b32 {s(sSh)}, {sW}, 13
        s_waitcnt lgkmcnt(0)
        """)
        units = []
        for m in range(3):
            for p in range(10):
                t, off = (tb, lambda hf, hi: 64 * (32 * hf + 2 * hi)) if p % 5 == 4 else (ta, lambda hf, hi: 64 * (32 * hf + hi))
                units.append((rq[m], gq, sQ0 if p < 5 else sQ1, 64 * (p % 5) * 8192, 16 * 8192, t,
                              [(20 * m + 2 * p + tau, off, 32 * tau) for tau in range(2)]))
        for q in range(2):
            for u in range(2):
                units.append((self.srdW, go, sO, 64 * u * 1280 + 256 * q, 16 * 1280, to,
                              [(60 + 2 * (2 * q + tl) + u, lambda hf, hi: 64 * (32 * hf + 2 * hi), 8 * tl) for tl in range(2)]))
        units.append((self.srdW, go4, sO4, 0, 32 * 1280, to4,
                      [(68 + u, lambda hf, hi: 32 * (32 * hf + 2 * hi), 2048 * u) for u in range(2)]))
        lslots = lambda un: [self.loc[f][1] for f, _, _ in un[6] if self.loc[f][0] == 'L']
        units.sort(key=lambda un: max(lslots(un) + [-1]))
        free = [(sSh, 0, 99), (sSh, 4096, 99), (self.sM1, 0, 99)] + [(self.sM1, 4096 * (i + 1), i) for i in range(NL // 2 - 1, -1, -1)]
        depth = self.cfg.get('ld_depth', 6)
        inflight = []
        nxt = 0
        for done in range(len(units)):
            while nxt < len(units) and len(inflight) < depth:
                top = max([k // 2 for un in units[:nxt + 1] for k in lslots(un)] + [-1])
                ok = [x for x in free if x[2] > top]
                if not ok:
                    break
                sl = min(ok, key=lambda x: x[2])
                free.remove(sl)
                un = units[nxt]
                for i in range(4):
                    a(f"s_add_u32 m0, {s(sl[0])}, {sl[1] + 1024 * i}")
                    a(f"s_add_u32 {sT0}, {s(un[2])}, {un[3] + un[4] * i}")
                    a(f"buffer_load_dwordx4 {v(un[1])}, {s(un[0], 4)}, {sT0} offen lds", tag=f"u{nxt}")
                inflight.append(sl)
                nxt += 1
            un, sl = units[done], inflight.pop(0)
            a(f"v_add_u32 {v(ad)}, {s(sl[0])}, {v(un[5])}")
            a.wait_tag(f"u{done}")
            for n, (f, off, cb) in enumerate(un[6]):
                kind, x = self.loc[f]
                r = x if kind == 'R' else TMP + 8 * n
                for hf in range(2):
                    for hi in range(2):
                        a(f"ds_read_b64_tr_b16 {v(r + 4 * hf + 2 * hi, 2)}, {v(ad)} offset:{sl[1] + off(hf, hi) + cb}")
            for n, (f, off, cb) in enumerate(un[6]):
                kind, x = self.loc[f]
                if kind == 'L':
                    for hf in range(2):
                        a(f"ds_write_b128 {v(self.vLW)}, {v(TMP + 8 * n + 4 * hf, 4)} offset:{4096 + 2048 * x + 1024 * hf}")
            a.wait(lg=0)
            free.append(sl)

    def spin(self, addr, srd, soff, thr, tmp, l_fail, width=''):
        a = self.a
        l, lx = a.newlabel('CP'), a.newlabel('CP')
        a(f"s_mov_b32 {s(self.sPoll)}, 0")
        a.label(l)
        a(f"buffer_load_dword {v(tmp)}, {v(addr)}, {s(srd, 4)}, {soff} offen sc1")
        a(f"v_cmp_gt_u32 vcc, {thr}, {v(tmp)}")
        a(f"s_cbranch_vccz {lx}")
        a(f"s_add_u32 {s(self.sPoll)}, {s(self.sPoll)}, 1")
        a(f"s_cmp_gt_u32 {s(self.sPoll)}, {self.cfg['maxpoll']}")
        a(f"s_cbranch_scc1 {l_fail}")
        a("s_sleep 1")
        a(f"s_branch {l}")
        a.label(lx)

    def program(self, l_fail, l_end, nlayers=2):
        a, B = self.a, self.B
        sT0, sT1, sW, sH, sX = s(self.sT0), s(self.sT1), s(self.sW), s(self.sH), s(self.sX)
        rD, rM = 4, 8
        L16 = v(self.vL16)
        self.srd(self.srdKV, 96, WK.WS_BYTES)
        self.srd(self.srdH, 96, WK.WS_BYTES)
        self.srd(self.srdX, 96, X_BYTES)
        self.srd(rD, 88, 256)
        self.setup_regs()
        a.wait(lg=0)
        lp = a.newlabel('CH_np')
        a(f"s_or_b32 {sT0}, {sX}, {sH}")
        a(f"s_or_b32 {sT0}, {sT0}, {sW}")
        a(f"s_cmp_lg_u32 {sT0}, 0")
        a(f"s_cbranch_scc1 {lp}")
        a(f"v_bfe_u32 {v(B(0))}, {L16}, 2, 6")
        a(f"v_mov_b32 {v(B(0) + 1)}, -1")
        st = self.sStamp
        a(f"s_mov_b32 {s(st + 8)}, -1\ns_mov_b32 {s(st + 9)}, -1")
        for rep in range(3):
            for r in range(2):
                a(f"s_mov_b32 {sT0}, {WK.HIST[0] + 8192 * r + 6144}")
                a(f"s_memtime {s(st, 2)}")
                a.wait(lg=0)
                a(f"buffer_store_dword {v(B(0) + 1)}, {v(B(0))}, {s(self.srdH, 4)}, {sT0} offen sc1")
                a.wait(vm=0)
                a(f"s_memtime {s(st + 2, 2)}")
                a.wait(lg=0)
                a(f"s_sub_u32 {s(st + 4)}, {s(st + 2)}, {s(st)}")
                a(f"s_min_u32 {s(st + 8 + r)}, {s(st + 8 + r)}, {s(st + 4)}")
        a(f"s_cmp_lt_u32 {s(st + 9)}, {s(st + 8)}")
        a(f"s_cselect_b32 {sT0}, 3, 1")
        a(f"v_mov_b32 {v(B(0) + 1)}, {sT0}")
        a(f"buffer_store_dword {v(B(0) + 1)}, off, {s(rD, 4)}, 0 offset:{WK.D_NEAR} sc1")
        a.label(lp)
        a(f"v_mov_b64 {v(B(0), 2)}, 0\nv_mov_b64 {v(B(0) + 2, 2)}, 0\nv_mov_b64 {v(B(1), 2)}, -1\nv_mov_b64 {v(B(1) + 2, 2)}, -1")
        a(f"s_lshr_b32 {sT0}, {sW}, 1")
        a(f"s_lshl_b32 {sT0}, {sT0}, 1")
        a(f"s_add_u32 {sT0}, {sT0}, {sX}")
        a(f"s_mul_i32 {sT0}, {sT0}, {X_BYTES}")
        a(f"s_lshl_b32 {sT1}, {sH}, 10")
        a(f"s_add_u32 {sT0}, {sT0}, {sT1}")
        a(f"s_add_u32 {sT0}, {sT0}, {WK.XA}")
        l1, l2 = a.newlabel('CH_i'), a.newlabel('CH_i')
        a(f"s_bitcmp1_b32 {sW}, 0")
        a(f"s_cbranch_scc1 {l1}")
        for i in range(6):
            if i == 3:
                a(f"s_branch {l2}")
                a.label(l1)
            a(f"s_add_u32 {sT1}, {sT0}, {0x8000 * i}")
            a(f"buffer_store_dwordx4 {v(B(i == 5), 4)}, {L16}, {s(self.srdKV, 4)}, {sT1} offen sc1")
        a.label(l2)
        a.wait(vm=0)
        a("s_barrier")
        l3 = a.newlabel('CH_i')
        a(f"s_getreg_b32 {s(self.sFast)}, hwreg(HW_REG_XCC_ID, 0, 3)")
        a(f"s_mul_i32 {s(self.sFast)}, {s(self.sFast)}, 6")
        a(f"s_cmp_lg_u32 {sW}, 0")
        a(f"s_cbranch_scc1 {l3}")
        a(f"s_lshl_b64 {s(st, 2)}, 1, {s(self.sFast)}")
        a(f"s_or_b32 {s(st + 1)}, {s(st + 1)}, 0x10000")
        a(f"v_mov_b64 {v(B(0), 2)}, {s(st, 2)}")
        a(f"s_lshl_b32 {sT0}, {sX}, 3")
        a("s_mov_b64 exec, 1")
        a(f"buffer_atomic_add_x2 {v(B(0), 2)}, off, {s(rD, 4)}, {sT0} offset:{WK.D_X}")
        a("s_mov_b64 exec, -1")
        a.label(l3)
        a.wait(vm=0)
        self.load_raw()
        self.srd(rD, 88, 256)
        self.srd(rM, 32, 10240)
        a.wait(lg=0)
        a(f"s_lshl_b32 {sT0}, {sX}, 3")
        a(f"v_mov_b32 {v(B(0))}, {WK.D_X + 4}")
        self.spin(B(0), rD, sT0, 32 << 16, B(0) + 1, l_fail)
        a(f"buffer_load_dwordx2 {v(B(0), 2)}, off, {s(rD, 4)}, {sT0} offset:{WK.D_X} sc1")
        a(f"v_readfirstlane_b32 {s(st)}, {v(B(0))}")
        a(f"v_readfirstlane_b32 {s(st + 1)}, {v(B(0) + 1)}")
        a(f"s_lshr_b64 {s(st, 2)}, {s(st, 2)}, {s(self.sFast)}")
        a(f"s_and_b32 {s(self.sFast)}, {s(st)}, 63")
        a(f"v_mov_b32 {v(B(0))}, {WK.D_NEAR}")
        self.spin(B(0), rD, '0', 1, B(0) + 1, l_fail)
        a(f"v_readfirstlane_b32 {s(self.sNst)}, {v(B(0) + 1)}")
        a(f"s_and_b32 {s(self.sNst)}, {s(self.sNst)}, 2")
        a(f"s_lshl_b32 {s(self.sNst)}, {s(self.sNst)}, 12")
        a(f"v_mov_b32 {v(B(0))}, {WK.D_INIT}")
        self.spin(B(0), rD, '0', 1, B(0) + 1, l_fail)
        a(f"v_and_b32 {v(B(0))}, 511, {L16}")
        a(f"s_mov_b32 {sT0}, {WK.F_PF + 160 * 16}")
        self.spin(B(0), self.srdKV, sT0, 1, B(0) + 1, l_fail)
        a(f"s_mul_i32 {sT0}, {sX}, {X_BYTES}")
        a(f"s_add_u32 {sT0}, {sT0}, {WK.XA}")
        a(f"s_add_u32 {s(self.srdX)}, {s(self.srdX)}, {sT0}")
        a(f"s_addc_u32 {s(self.srdX + 1)}, {s(self.srdX + 1)}, 0")
        a(f"s_mul_i32 {s(self.sFl)}, {sH}, 96")
        a(f"s_add_u32 {s(self.sFl)}, {s(self.sFl)}, {WK.F_G1}")
        a(f"s_mov_b32 {s(self.sL)}, 0")
        l_layer = a.newlabel('CH_layer')
        a("s_barrier")
        a.label(l_layer)
        lsel = lambda dst, pair: a(f"s_mul_i32 {s(dst)}, {s(self.sL)}, {pair[1] - pair[0]}\ns_add_u32 {s(dst)}, {s(dst)}, {pair[0]}")
        lsel(self.sKV, WK.KV)
        lsel(self.sRW, WK.HIST)
        lsel(self.sPK, WK.KVM)
        a(f"""
        s_lshl_b32 {sT0}, {sH}, 14
        s_lshl_b32 {sT1}, {sW}, 11
        s_add_u32 {sT0}, {sT0}, {sT1}
        s_add_u32 {s(self.sKV)}, {s(self.sKV)}, {sT0}
        s_lshr_b32 {sT0}, {sT0}, 2
        s_add_u32 {s(self.sPK)}, {s(self.sPK)}, {sT0}
        s_add_u32 {s(self.sPV)}, {s(self.sPK)}, 2048
        s_cmp_eq_u32 {sX}, 0
        s_cselect_b32 {s(self.sPK)}, {s(self.sPK)}, {BIG}
        s_cselect_b32 {s(self.sPV)}, {BIG}, {s(self.sPV)}
        s_lshl_b32 {sT0}, {sX}, 14
        s_add_u32 {sT0}, {sT0}, {s(self.sNst)}
        s_add_u32 {s(self.sRW)}, {s(self.sRW)}, {sT0}
        s_xor_b32 {s(self.sRR)}, {s(self.sRW)}, 0x4000
        s_sub_u32 {s(self.sRR)}, {s(self.sRR)}, {H_STEP}
        s_mov_b32 {s(self.sStep)}, 0
        s_mov_b32 {s(self.sAGr)}, {X_AG}
        s_lshl_b32 {s(self.sThr)}, {s(self.sL)}, 6
        """)
        ln, a4, a1, tmp = B(0), B(0) + 1, B(0) + 2, B(0) + 3
        a(f"v_lshrrev_b32 {v(ln)}, 4, {L16}")
        a(f"s_lshl_b32 {sT0}, {sW}, 7")
        lanebits(a, a4, ln, [(2, 2, 2560), (0, 1, 1280), (4, 2, 32), (1, 1, 16)], tmp, sT0)
        a(f"s_lshl_b32 {sT0}, {sW}, 5")
        a(f"s_add_u32 {sT0}, {sT0}, 512")
        lanebits(a, a1, ln, [(4, 2, 2560), (2, 1, 1280), (3, 1, 16), (0, 2, 4)], tmp, sT0)
        a(f"s_mov_b32 {s(st)}, 0x05040100\ns_mov_b32 {s(st + 1)}, 0x07060302")
        for rem in range(2):
            g4, g1 = self.gregs(rem)
            a(f"s_xor_b32 {sT0}, {sX}, {rem}")
            a(f"s_mul_i32 {sT0}, {sT0}, 640")
            a(f"buffer_load_dwordx4 {v(B(1), 4)}, {v(a4)}, {s(rM, 4)}, {sT0} offen")
            a(f"buffer_load_dword {v(g1)}, {v(a1)}, {s(rM, 4)}, {sT0} offen")
            for i in range(4):
                a(f"v_perm_b32 {v(g4 + i)}, {v(B(1) + 2 + (i >> 1))}, {v(B(1) + (i >> 1))}, {s(st + (i & 1))}")
            for r in (g4, g4 + 2, g1):
                a(f"v_min_u32 {v(r)}, -2, {v(r)}")
        for o in self.gaddr() + self.gwrite(0):
            a(o)
        a(f"v_and_b32 {v(B(0))}, 48, {L16}")
        a(f"s_add_u32 {sT0}, {s(self.sThr)}, 2")
        self.spin(B(0), self.srdKV, s(self.sFl), sT0, B(0) + 1, l_fail)
        for o in self.kv_ops(0) + self.zero(B(0), 16) + self.zero(B(10), 8):
            a(o)
        a(f"s_mov_b32 {s(self.sPoll)}, 0")
        a.wait(vm=0, lg=0)
        l_slow, l_fin = a.newlabel('CH_slow'), a.newlabel('CH_fin')
        a(f"s_cmp_lg_u32 {s(self.sFast)}, 32")
        a(f"s_cbranch_scc1 {l_slow}")
        self.loop(l_fail)
        a(f"s_branch {l_fin}")
        a.label(l_slow)
        self.loop(l_fail, ' sc1')
        a.label(l_fin)
        a.forget()
        a.wait(vm=0, lg=0)
        a.fence()
        a("s_barrier")
        a(f"v_mov_b64 {v(B(0), 2)}, 0")
        lz = a.newlabel('CH_z')
        a(f"s_cmp_lg_u32 {sW}, 0")
        a(f"s_cbranch_scc1 {lz}")
        a(f"buffer_store_dwordx2 {v(B(0), 2)}, {v(self.vAGW)}, {s(self.srdH, 4)}, {s(self.sRW)} offen sc1")
        a.label(lz)
        a(f"s_add_u32 {s(self.sL)}, {s(self.sL)}, 1")
        a(f"s_cmp_ge_u32 {s(self.sL)}, {nlayers}")
        a(f"s_cbranch_scc1 {l_end}")
        a(f"s_add_u32 {s(self.srdX)}, {s(self.srdX)}, {2 * X_BYTES}")
        a(f"s_addc_u32 {s(self.srdX + 1)}, {s(self.srdX + 1)}, 0")
        a.wait(vm=0)
        a(f"s_branch {l_layer}")
```

```python
import numpy as np
from asmgen import v, s, lanebits

FLG = 0x0
XA = 0x10000
HIST = (0x200000, 0x600000)
WT = 0x800000
XF = (None, 0xB00000, 0xE00000, 0x1100000)
ZT = (0x1400000, 0x1700000)
ZP = (0x1A00000, 0x1D00000)
QF = (0x2000000, 0x3000000)
OF = (0x4000000, 0x5000000)
KVM = (0x6000000, 0x6800000)
KV = (0x7000000, 0x9100000)
WS_BYTES = 0x10000000
F_WT, F_F1, F_F2, F_F3, F_G1, F_AT, F_G4, F_PF = (FLG + 4096 * i for i in range(8))
FLG_BYTES = 8 * 4096
SEG = 40960
NGRP = 19
D_INIT, D_NEAR, D_X = 0, 4, 128

f32 = lambda x: hex(int(np.float32(x).view(np.uint32)))

BQ, BI, BF = 256, 336, 416
L_RED = 0
L_ST = 65536
L_S2 = 67584
L_A = 69632


class Worker:
    def __init__(self, a, l_fail, cfg=None):
        self.a = a
        self.l_fail = l_fail
        self.cfg = dict(maxpoll=200000)
        if cfg:
            self.cfg.update(cfg)
        self.rWS, self.rX0, self.rOUT, self.rT, self.rT2, self.rDBG = 4, 8, 12, 16, 20, 24
        self.sY, self.sW, self.sL = 28, 29, 30
        self.sT = list(range(32, 44))
        self.sSeg, self.sNext, self.sEnd, self.sStr, self.sPoll, self.sCnt = 44, 45, 46, 47, 48, 49
        self.sAb, self.sOb, self.sRb, self.sFl, self.sAo, self.sOo, self.sRo, self.sThr = 50, 51, 52, 53, 54, 55, 56, 57
        self.sOs, self.sNear, self.sLA, self.sL64 = 58, 59, 60, 61
        self.sC = list(range(62, 70))
        self.vL16, self.vLane = 0, 1

    def srd(self, r, karg, nbytes):
        a = self.a
        a(f"s_load_dwordx2 {s(r, 2)}, s[0:1], {karg}")
        a(f"s_mov_b32 {s(r + 2)}, {nbytes}")
        a(f"s_mov_b32 {s(r + 3)}, 0x20000")
        a.wait(lg=0)

    def lsel(self, dst, pair, add=0):
        a = self.a
        a(f"s_mul_i32 {s(dst)}, {s(self.sL)}, {pair[1] - pair[0]}")
        a(f"s_add_u32 {s(dst)}, {s(dst)}, {pair[0] + add}")

    def poll(self, addrs, soff, thr, tmp, srd=None, cmp='gt', sleep=1):
        a = self.a
        srd = self.rWS if srd is None else srd
        l, lx = a.newlabel('P'), a.newlabel('P')
        a(f"s_mov_b32 {s(self.sPoll)}, 0")
        a.label(l)
        for i, r in enumerate(addrs):
            a(f"buffer_load_dword {v(tmp + i)}, {v(r)}, {s(srd, 4)}, {soff} offen sc1")
        a.wait(vm=0)
        for i in range(1, len(addrs)):
            a(f"v_{'min' if cmp == 'gt' else 'max'}_u32 {v(tmp)}, {v(tmp)}, {v(tmp + i)}")
        a(f"v_cmp_{cmp}_u32 vcc, {thr}, {v(tmp)}")
        a(f"s_cbranch_vccz {lx}")
        a(f"s_add_u32 {s(self.sPoll)}, {s(self.sPoll)}, 1")
        a(f"s_cmp_gt_u32 {s(self.sPoll)}, {self.cfg['maxpoll']}")
        a(f"s_cbranch_scc1 {self.l_fail}")
        if sleep:
            a(f"s_sleep {sleep}")
        a(f"s_branch {l}")
        a.label(lx)

    def poll_range(self, stage, first, count, thr, tmp):
        a = self.a
        n = (count + 63) // 64
        for i in range(n):
            a(f"v_add_u32 {v(tmp + 4 + i)}, {64 * i}, {v(self.vLane)}")
            a(f"v_min_u32 {v(tmp + 4 + i)}, {count - 1}, {v(tmp + 4 + i)}")
            a(f"v_lshlrev_b32 {v(tmp + 4 + i)}, 4, {v(tmp + 4 + i)}")
        t = s(self.sT[0])
        if isinstance(first, int):
            a(f"s_mov_b32 {t}, {stage + 16 * first}")
        else:
            a(f"s_lshl_b32 {t}, {first}, 4")
            a(f"s_add_u32 {t}, {t}, {stage}")
        self.poll([tmp + 4 + i for i in range(n)], t, thr, tmp)

    def flag(self, stage, val, tmp, perwave=False):
        a = self.a
        l = a.newlabel('F')
        t = s(self.sT[0])
        if not perwave:
            a(f"s_cmp_lg_u32 {s(self.sW)}, 0")
            a(f"s_cbranch_scc1 {l}")
        a.raw(f"    s_lshl_b32 {t}, {s(self.sY)}, 2")
        a.raw(f"    s_add_u32 {t}, {t}, {s(self.sW)}")
        a.raw(f"    s_lshl_b32 {t}, {t}, 2")
        a.raw(f"    s_add_u32 {t}, {t}, {stage}")
        a.raw(f"    v_mov_b32 {v(tmp)}, {val}")
        a.raw(f"    s_mov_b64 exec, 1")
        a.raw(f"    buffer_store_dword {v(tmp)}, off, {s(self.rWS, 4)}, {t} sc1")
        a.raw(f"    s_mov_b64 exec, -1")
        a.label(l)

    def done(self, stage, val, tmp):
        self.a.wait(vm=0)
        self.a("s_barrier")
        self.flag(stage, val, tmp)

    def wait_init(self, tmp):
        a = self.a
        a(f"v_mov_b32 {v(tmp + 1)}, {D_INIT}")
        self.poll([tmp + 1], '0', 1, tmp, srd=self.rDBG)

    def div(self, q, r, x, d):
        a = self.a
        a(f"s_mul_i32 {s(q)}, {s(x)}, {(65536 + d - 1) // d}")
        a(f"s_lshr_b32 {s(q)}, {s(q)}, 16")
        if r is not None:
            a(f"s_mul_i32 {s(r)}, {s(q)}, {d}")
            a(f"s_sub_u32 {s(r)}, {s(x)}, {s(r)}")

    def init_flags(self):
        a = self.a
        l = a.newlabel('I')
        a(f"s_cmp_lg_u32 {s(self.sY)}, 191")
        a(f"s_cbranch_scc1 {l}")
        a("v_mov_b64 v[4:5], 0\nv_mov_b64 v[6:7], 0")
        a(f"s_lshl_b32 {s(self.sT[0])}, {s(self.sW)}, 13")
        for i in range(8):
            a(f"s_add_u32 {s(self.sT[1])}, {s(self.sT[0])}, {FLG + 1024 * i}")
            a(f"buffer_store_dwordx4 v[4:7], {v(self.vL16)}, {s(self.rWS, 4)}, {s(self.sT[1])} offen sc1")
        a.wait(vm=0)
        a("s_barrier")
        a("v_mov_b32 v8, 1")
        a(f"buffer_store_dword v8, off, {s(self.rDBG, 4)}, 0 offset:{D_INIT} sc1")
        a.label(l)

    def wt_issue(self, R):
        a = self.a
        T = self.sT
        self.srd(self.rT, 8, 2048 * 642)
        self.srd(self.rT2, 16, 2048 * 642)
        a(f"s_lshl_b32 {s(T[2])}, {s(self.sY)}, 2")
        a(f"s_add_u32 {s(T[2])}, {s(T[2])}, {s(self.sW)}")
        self.div(T[3], T[4], T[2], 5)
        a(f"s_lshr_b32 {s(T[5])}, {s(T[3])}, 1")
        a(f"s_and_b32 {s(T[6])}, {s(T[3])}, 1")
        a(f"s_lshl_b32 {s(T[6])}, {s(T[6])}, 8")
        a(f"s_add_u32 {s(T[5])}, {s(T[5])}, {s(T[6])}")
        a(f"s_mul_i32 {s(T[5])}, {s(T[5])}, 642")
        a(f"s_lshl_b32 {s(T[6])}, {s(T[4])}, 7")
        a(f"s_add_u32 {s(T[5])}, {s(T[5])}, {s(T[6])}")
        a(f"v_lshlrev_b32 {v(R + 32)}, 1, {v(self.vLane)}")
        for q in range(4):
            for j in range(4):
                a(f"s_add_u32 {s(T[6])}, {s(T[5])}, {64 * (8 * q + j) * 642 + 2}")
                a(f"buffer_load_ushort {v(R + 4 * q + j)}, {v(R + 32)}, {s(self.rT, 4)}, {s(T[6])} offen")
                a(f"buffer_load_ushort {v(R + 16 + 4 * q + j)}, {v(R + 32)}, {s(self.rT2, 4)}, {s(T[6])} offen")
        a(f"s_mul_i32 {s(self.sC[0])}, {s(T[3])}, {4 * 5120}")
        a(f"s_lshl_b32 {s(T[6])}, {s(T[4])}, 10")
        a(f"s_add_u32 {s(self.sC[0])}, {s(self.sC[0])}, {s(T[6])}")
        a(f"s_add_u32 {s(self.sC[0])}, {s(self.sC[0])}, {WT}")

    def wt_store(self, R):
        a = self.a
        for i in range(16):
            a(f"v_lshl_or_b32 {v(R + i)}, {v(R + 16 + i)}, 16, {v(R + i)}")
        for q in range(4):
            a(f"s_add_u32 {s(self.sT[1])}, {s(self.sC[0])}, {5120 * q}")
            a(f"buffer_store_dwordx4 {v(R + 4 * q, 4)}, {v(self.vL16)}, {s(self.rWS, 4)}, {s(self.sT[1])} offen sc1")

    def gen_dft(self, dst, inverse, sl, t):
        a = self.a
        ln, x0, st, tm = self.vLane, t, t + 1, t + 2
        T = self.sT
        a(f"s_mov_b32 {s(T[3])}, {f32(1 / 640)}")
        for tile in range(2):
            a(f"s_lshl_b32 {s(T[2])}, {s(sl)}, 6")
            a(f"s_add_u32 {s(T[2])}, {s(T[2])}, {32 * tile}")
            if not inverse:
                a(f"s_lshr_b32 {s(T[2])}, {s(T[2])}, 1")
                a(f"s_add_u32 {s(T[2])}, {s(T[2])}, 1")
                lanebits(a, st, ln, [(1, 4, 1)], tm, s(T[2]))
                a(f"s_mul_i32 {s(T[4])}, {s(self.sW)}, 160")
                lanebits(a, x0, ln, [(5, 1, 8)], tm, s(T[4]))
                a(f"v_mul_u32_u24 {v(x0)}, {v(x0)}, {v(st)}")
                a(f"v_and_b32 {v(tm)}, 1, {v(ln)}")
                a(f"v_mul_u32_u24 {v(tm)}, 160, {v(tm)}")
                a(f"v_add_u32 {v(x0)}, {v(x0)}, {v(tm)}")
                steps = [(16 * ks + j, 0) for ks in range(10) for j in range(8)]
            else:
                lanebits(a, st, ln, [(0, 2, 1), (2, 1, 8), (3, 1, 4), (4, 1, 16)], tm, s(T[2]))
                a(f"s_mul_i32 {s(T[4])}, {s(self.sW)}, 80")
                a(f"s_add_u32 {s(T[4])}, {s(T[4])}, 1")
                lanebits(a, x0, ln, [(5, 1, 4)], tm, s(T[4]))
                a(f"v_mul_u32_u24 {v(x0)}, {v(x0)}, {v(st)}")
                steps = [(8 * ks + (j >> 1), j & 1) for ks in range(10) for j in range(8)]
            a(f"v_cvt_f32_u32 {v(x0)}, {v(x0)}")
            a(f"v_cvt_f32_u32 {v(st)}, {v(st)}")
            a(f"v_mul_f32 {v(x0)}, {s(T[3])}, {v(x0)}")
            a(f"v_mul_f32 {v(st)}, {s(T[3])}, {v(st)}")
            a(f"v_fract_f32 {v(x0)}, {v(x0)}")
            for i in range(0, 80, 2):
                (m0, q0), (m1, q1) = steps[i], steps[i + 1]
                u = tm + 2 * ((i >> 1) & 1)
                a(f"v_fmamk_f32 {v(u)}, {v(st)}, {f32(m0)}, {v(x0)}")
                if inverse:
                    a(f"v_sin_f32 {v(u + 1)}, -{v(u)}")
                else:
                    a(f"v_fmamk_f32 {v(u + 1)}, {v(st)}, {f32(m1)}, {v(x0)}")
                    a(f"v_cos_f32 {v(u + 1)}, {v(u + 1)}")
                a(f"v_cos_f32 {v(u)}, {v(u)}")
                if i:
                    up = tm + 2 * (((i >> 1) - 1) & 1)
                    a(f"v_accvgpr_write_b32 {v(dst + 40 * tile + (i >> 1) - 1)}, {v(tm + 4)}")
                a(f"v_cvt_pk_bf16_f32 {v(tm + 4)}, {v(u)}, {v(u + 1)}")
            a(f"v_accvgpr_write_b32 {v(dst + 40 * tile + 39)}, {v(tm + 4)}")

    def qkv_role(self):
        a = self.a
        self.div(self.sC[1], self.sC[3], self.sY, 6)
        a(f"s_lshr_b32 {s(self.sC[2])}, {s(self.sC[3])}, 1")
        a(f"s_and_b32 {s(self.sC[3])}, {s(self.sC[3])}, 1")

    def qkv_issue(self, t):
        a = self.a
        T = self.sT
        self.qkv_role()
        a(f"s_lshl_b32 {s(T[2])}, {s(self.sC[2])}, 3")
        a(f"s_add_u32 {s(T[2])}, {s(T[2])}, 48")
        a(f"s_cmp_eq_u32 {s(self.sC[2])}, 2")
        a(f"s_cselect_b32 {s(T[2])}, 40, {s(T[2])}")
        self.srd(self.rT, s(T[2]), 640 * 8192)
        lanebits(a, t, self.vLane, [(3, 3, 8192), (0, 3, 16)], t + 1)
        a(f"s_mul_i32 {s(T[2])}, {s(self.sW)}, {160 * 8192}")
        a(f"s_lshl_b32 {s(T[3])}, {s(self.sC[1])}, 8")
        a(f"s_add_u32 {s(T[2])}, {s(T[2])}, {s(T[3])}")
        a(f"s_lshl_b32 {s(T[3])}, {s(self.sC[3])}, 7")
        a(f"s_add_u32 {s(T[2])}, {s(T[2])}, {s(T[3])}")
        for i in range(20):
            a(f"s_add_u32 m0, {s(self.sLA)}, {1024 * i}")
            a(f"s_add_u32 {s(T[3])}, {s(T[2])}, {8 * 8192 * i}")
            a(f"buffer_load_dwordx4 {v(t)}, {s(self.rT, 4)}, {s(T[3])} offen lds", tag='qkv')

    def qkv_fetch(self, t):
        a = self.a
        l1, l2 = a.newlabel('Q'), a.newlabel('Q')
        a(f"s_cmp_eq_u32 {s(self.sC[2])}, 1")
        a(f"s_cbranch_scc1 {l1}")
        lanebits(a, t, self.vLane, [(5, 1, 1024), (2, 2, 128), (4, 1, 16), (1, 1, 8), (0, 1, 32)], t + 1, s(self.sLA))
        a(f"s_branch {l2}")
        a.label(l1)
        lanebits(a, t, self.vLane, [(5, 1, 1024), (2, 2, 128), (4, 1, 32), (0, 2, 8)], t + 1, s(self.sLA))
        a.label(l2)
        a.wait_tag('qkv')
        for tile in range(2):
            for ks in range(10):
                for hi in range(2):
                    a(f"ds_read_b64_tr_b16 {v(BQ + 40 * tile + 4 * ks + 2 * hi, 2)}, {v(t)} offset:{2048 * ks + 512 * hi + 64 * tile}")
        a.wait(lg=0)

    def prefill(self):
        a = self.a
        T = self.sT
        a("v_mov_b64 v[4:5], -1\nv_mov_b64 v[6:7], -1")
        a(f"s_sub_u32 {s(T[2])}, {s(self.sY)}, 160")
        a(f"s_lshl_b32 {s(T[2])}, {s(T[2])}, 2")
        a(f"s_add_u32 {s(T[2])}, {s(T[2])}, {s(self.sW)}")
        a(f"s_lshl_b32 {s(T[2])}, {s(T[2])}, 14")
        for l in range(2):
            for r in range(2):
                for i in range(5):
                    a(f"s_add_u32 {s(T[3])}, {s(T[2])}, {HIST[l] + 8192 * r + 1024 * i}")
                    a(f"buffer_store_dwordx4 v[4:7], {v(self.vL16)}, {s(self.rWS, 4)}, {s(T[3])} offen sc1")
        self.done(F_PF, 1, 8)

    GA = (16, 56)
    GACC, GST, GSR, GCS, GRES, GM = 96, 128, 130, 154, (164, 168), 172
    GAA, GRD, GWR, GSW, GSA, GOA, GRA, GS2W, GS2R = 2, 3, 4, 5, 6, 7, 8, 9, 10

    def gemm_setup(self, kind):
        a, ln, t = self.a, self.vLane, self.GM
        T = self.sT
        w = s(self.sW)
        tok = [(0, 2, 1), (2, 1, 8), (3, 1, 4), (4, 1, 16)]
        mul = lambda terms, m: [(lo, n, k * m) for lo, n, k in terms]
        if kind == 'f1row':
            a(f"s_mul_i32 {s(T[2])}, {w}, 320")
            lanebits(a, self.GAA, ln, mul(tok, 1280) + [(5, 1, 16)], t, s(T[2]))
        elif kind in ('f3', 'f3row'):
            lanebits(a, self.GAA, ln, [(5, 1, 512), (2, 2, 64), (4, 1, 32), (0, 1, 16), (1, 1, 8)], t, s(self.sLA))
        a(f"s_lshl_b32 {s(T[2])}, {w}, 13")
        a(f"v_add_u32 {v(self.GWR)}, {s(T[2])}, {v(self.vL16)}")
        a(f"s_lshl_b32 {s(T[2])}, {w}, 3")
        a(f"s_add_u32 {s(T[2])}, {s(T[2])}, {L_ST}")
        lanebits(a, self.GSW, ln, [(0, 5, 32)], t, s(T[2]))
        a(f"s_lshl_b32 {s(T[3])}, {w}, 11")
        a(f"s_lshl_b32 {s(T[4])}, {w}, 8")
        a(f"s_add_u32 {s(T[4])}, {s(T[4])}, {L_S2}")
        if kind in ('f1row', 'f1'):
            a(f"s_lshr_b32 {s(T[2])}, {w}, 1")
            a(f"s_lshl_b32 {s(T[2])}, {s(T[2])}, 12")
            a(f"s_and_b32 {s(T[5])}, {w}, 1")
            a(f"s_lshl_b32 {s(T[5])}, {s(T[5])}, 8")
            a(f"s_add_u32 {s(T[2])}, {s(T[2])}, {s(T[5])}")
            lanebits(a, self.GRD, ln, [(1, 1, 2048), (0, 1, 512), (2, 4, 16)], t, s(T[2]))
            lanebits(a, self.GS2R, ln, [(0, 2, 32)], t, s(T[4]))
            a(f"s_lshl_b32 {s(T[2])}, {w}, 10")
            a(f"v_add_u32 {v(self.GOA)}, {s(T[2])}, {v(self.vL16)}")
        elif kind == 'k':
            src = [(1, 1, 32), (0, 1, 1), (4, 1, 2), (5, 1, 8), (2, 1, 4), (3, 1, 16)]
            lanebits(a, self.GRD, ln, mul(src, 16), t, s(T[3]))
            lanebits(a, self.GSA, ln, mul(src[1:], 32), t, L_ST)
            a(f"s_lshl_b32 {s(T[2])}, {w}, 8")
            lanebits(a, self.GOA, ln, [(4, 2, 2048), (0, 4, 16)], t, s(T[2]))
        else:
            a(f"v_add_u32 {v(self.GRD)}, {s(T[3])}, {v(self.vL16)}")
            if kind == 'v':
                a(f"s_lshr_b32 {s(T[2])}, {w}, 1")
                a(f"s_lshl_b32 {s(T[2])}, {s(T[2])}, 11")
                a(f"s_and_b32 {s(T[5])}, {w}, 1")
                a(f"s_lshl_b32 {s(T[6])}, {s(T[5])}, 9")
                a(f"s_add_u32 {s(T[2])}, {s(T[2])}, {s(T[6])}")
                lanebits(a, self.GOA, ln, [(4, 1, 1024), (5, 1, 256), (0, 4, 16)], t, s(T[2]))
                a(f"s_lshl_b32 {s(T[5])}, {s(T[5])}, 6")
                a(f"s_add_u32 {s(T[5])}, {s(T[5])}, {s(T[4])}")
                lanebits(a, self.GS2R, ln, [(5, 1, 32)], t, s(T[5]))
            else:
                a(f"s_lshl_b32 {s(T[2])}, {w}, 10")
                a(f"v_add_u32 {v(self.GOA)}, {s(T[2])}, {v(self.vL16)}")
        if kind != 'k':
            lanebits(a, self.GSA, ln, [(0, 5, 32)], t, L_ST)
        if kind in ('f1row', 'f1', 'v'):
            lanebits(a, self.GS2W, ln, mul(tok, 4), t, s(T[4]))
        if kind == 'f3row':
            a(f"s_lshl_b32 {s(T[2])}, {w}, 5")
            lanebits(a, self.GRA, ln, mul(tok, 1280) + [(5, 1, 16)], t, s(T[2]))

    def gemm_mfma(self, Bb, mode, A, ks):
        for tile in range(2):
            x, y = v(A + 4 * ks, 4), v(Bb + 40 * tile + 4 * ks, 4)
            if mode == 'T':
                x, y = y, x
            acc = v(self.GACC + 16 * tile, 16)
            self.a(f"v_mfma_f32_32x32x16_bf16 {acc}, {x}, {y}, {'0' if ks == 0 else acc}")

    def gemm_reduce(self, par, between=None, prebar=None):
        a = self.a
        for i in range(8):
            a(f"ds_write_b128 {v(self.GWR)}, {v(self.GACC + 4 * i, 4)} offset:{L_RED + 32768 * par + 1024 * i}")
            if between:
                between(i)
        if prebar:
            prebar()
        a.wait(lg=0)
        a("s_barrier")

    def gemm_sum(self, par, mid=None):
        a = self.a
        R = self.GACC
        for src in range(4):
            for rh in range(2):
                a(f"ds_read_b128 {v(R + 8 * src + 4 * rh, 4)}, {v(self.GRD)} offset:{L_RED + 32768 * par + 8192 * src + 1024 * rh}")
        if mid:
            mid()
        for src in range(1, 4):
            for i in range(0, 8, 2):
                a(f"v_pk_add_f32 {v(R + i, 2)}, {v(R + i, 2)}, {v(R + 8 * src + i, 2)}")

    def colsum(self, Bb, mode):
        a = self.a
        A = self.GA[1]
        a(f"s_mov_b32 {s(self.sT[2])}, 0x3f803f80")
        for i in range(4):
            a(f"v_mov_b32 {v(A + i)}, {s(self.sT[2])}")
        for ks in range(10):
            self.gemm_mfma(Bb, mode, A - 4 * ks, ks)
        self.gemm_reduce(1)
        self.gemm_sum(1)
        for i in range(0, 8, 2):
            a(f"v_mov_b64 {v(self.GCS + i, 2)}, {v(self.GACC + i, 2)}")
        a("s_barrier")

    def a_issue(self, kind, par, ks=None):
        a = self.a
        A = self.GA[par]
        out = []
        for k in (range(10) if ks is None else [ks]):
            so = s(self.sAo)
            if kind == 'f1row':
                out.append(f"buffer_load_dwordx4 {v(A + 4 * k, 4)}, {v(self.GAA)}, {s(self.rX0, 4)}, {so} offen offset:{32 * k}")
                continue
            if k % 4 == 0 and k:
                out.append(f"s_add_u32 {so}, {so}, 4096")
            if kind in ('f3', 'f3row'):
                if k % 4 == 0:
                    out.append(f"s_add_u32 m0, {s(self.sLA)}, {10240 * par + 1024 * k}")
                out.append(f"buffer_load_dwordx4 {v(self.vL16)}, {s(self.rWS, 4)}, {so} offen offset:{1024 * (k % 4)} sc1 lds")
            else:
                out.append(f"buffer_load_dwordx4 {v(A + 4 * k, 4)}, {v(self.vL16)}, {s(self.rWS, 4)}, {so} offen offset:{1024 * (k % 4)} sc1")
        if ks in (None, 9):
            if kind == 'f3row':
                out.append(f"buffer_load_dwordx4 {v(self.GRES[par], 4)}, {v(self.GRA)}, {s(self.rX0, 4)}, {s(self.sRo)} offen")
            if kind == 'f3':
                out.append(f"buffer_load_dwordx4 {v(self.GRES[par], 4)}, {v(self.GOA)}, {s(self.rWS, 4)}, {s(self.sRo)} offen sc1")
        for o in out:
            a(o, tag=f"A{par}")

    def a_offsets(self, seg):
        a = self.a
        a(f"s_mul_i32 {s(self.sAo)}, {s(seg)}, {SEG}")
        a(f"s_add_u32 {s(self.sRo)}, {s(self.sAo)}, {s(self.sRb)}")
        a(f"s_add_u32 {s(self.sAo)}, {s(self.sAo)}, {s(self.sAb)}")

    def gemm_task(self, kind, par, stage, prefetch):
        a = self.a
        Bb = {'f1row': BF, 'f1': BF, 'f3': BI, 'f3row': BI}.get(kind, BQ)
        mode = 'N' if kind in ('f1row', 'f1', 'v') else 'T'
        ln = kind not in ('f3', 'f3row')
        A, R, ST, SR, M = self.GA[par], self.GACC, self.GST, self.GSR, self.GM
        if prefetch:
            self.a_offsets(self.sNext)
        if not ln:
            a.wait_tag(f"A{par}")
            for ks in range(10):
                for hi in range(2):
                    a(f"ds_read_b64_tr_b16 {v(A + 4 * ks + 2 * hi, 2)}, {v(self.GAA)} offset:{10240 * par + 1024 * ks + 256 * hi}")
        for ks in range(10):
            self.gemm_mfma(Bb, mode, A, ks)
            if prefetch:
                self.a_issue(kind, 1 - par, ks)
        a(f"s_mul_i32 {s(self.sOo)}, {s(self.sSeg)}, {s(self.sOs)}")
        a(f"s_add_u32 {s(self.sOo)}, {s(self.sOo)}, {s(self.sOb)}")

        def stats(i):
            if i == 0:
                a(f"v_mov_b64 {v(ST, 2)}, 0")
                a(f"s_mov_b32 {s(self.sT[2])}, 0x3f803f80")
            for r in range(A + 5 * i, A + 5 * i + 5):
                a(f"v_dot2c_f32_bf16 {v(ST)}, {s(self.sT[2])}, {v(r)}")
                a(f"v_dot2c_f32_bf16 {v(ST + 1)}, {v(r)}, {v(r)}")

        def prebar():
            if ln:
                a(f"v_mov_b64 {v(M, 2)}, {v(ST, 2)}")
                a(f"v_permlane32_swap_b32 {v(ST)}, {v(M)}")
                a(f"v_permlane32_swap_b32 {v(ST + 1)}, {v(M + 1)}")
                a(f"v_pk_add_f32 {v(ST, 2)}, {v(ST, 2)}, {v(M, 2)}")
                a(f"ds_write_b64 {v(self.GSW)}, {v(ST, 2)} offset:{1024 * par}")
            a.wait_tag('out')
        self.gemm_reduce(par, stats if ln else None, prebar)
        if stage is not None:
            self.flag(stage, s(self.sCnt), M + 6)
            a(f"s_add_u32 {s(self.sCnt)}, {s(self.sCnt)}, 1")
        if ln:
            a(f"ds_read_b128 {v(SR, 4)}, {v(self.GSA)} offset:{1024 * par}")
            a(f"ds_read_b128 {v(SR + 4, 4)}, {v(self.GSA)} offset:{1024 * par + 16}")

        def mid():
            if not ln:
                return
            a(f"v_pk_add_f32 {v(SR, 2)}, {v(SR, 2)}, {v(SR + 2, 2)}")
            a(f"v_pk_add_f32 {v(SR + 4, 2)}, {v(SR + 4, 2)}, {v(SR + 6, 2)}")
            a(f"v_pk_add_f32 {v(SR, 2)}, {v(SR, 2)}, {v(SR + 4, 2)}")
            a(f"v_mul_f32 {v(SR)}, {f32(1 / 640)}, {v(SR)}")
            a(f"v_mul_f32 {v(SR + 1)}, {f32(1 / 640)}, {v(SR + 1)}")
            a(f"v_fma_f32 {v(SR + 1)}, -{v(SR)}, {v(SR)}, {v(SR + 1)}")
            a(f"v_max_f32 {v(SR + 1)}, 0, {v(SR + 1)}")
            a(f"v_add_f32 {v(SR + 1)}, {f32(1e-5)}, {v(SR + 1)}")
            a(f"v_rsq_f32 {v(SR + 1)}, {v(SR + 1)}")
            if mode == 'N':
                a(f"ds_write2_b32 {v(self.GS2W)}, {v(SR)}, {v(SR + 1)} offset0:0 offset1:32")
                for i in range(4):
                    a(f"ds_read_b128 {v(SR + 8 + 4 * i, 4)}, {v(self.GS2R)} offset:{128 * (i >> 1) + 16 * (i & 1)}")
        self.gemm_sum(par, mid)
        if ln:
            for i in range(8):
                mu, rs = (SR, SR + 1) if mode == 'T' else (SR + 8 + i, SR + 16 + i)
                a(f"v_fma_f32 {v(R + i)}, -{v(mu)}, {v(self.GCS + i)}, {v(R + i)}")
                a(f"v_mul_f32 {v(R + i)}, {v(R + i)}, {v(rs)}")
        for i in range(4):
            a(f"v_cvt_pk_bf16_f32 {v(M + i)}, {v(R + 2 * i)}, {v(R + 2 * i + 1)}")
        if not ln:
            self.residual(M, self.GRES[par], R)
        a(f"buffer_store_dwordx4 {v(M, 4)}, {v(self.GOA)}, {s(self.rWS, 4)}, {s(self.sOo)} offen sc1", tag='out')

    def residual(self, Y, X, t):
        a = self.a
        for i in range(4):
            a(f"v_lshlrev_b32 {v(t)}, 16, {v(Y + i)}")
            a(f"v_lshlrev_b32 {v(t + 1)}, 16, {v(X + i)}")
            a(f"v_and_b32 {v(t + 2)}, 0xffff0000, {v(Y + i)}")
            a(f"v_and_b32 {v(t + 3)}, 0xffff0000, {v(X + i)}")
            a(f"v_add_f32 {v(t)}, {v(t)}, {v(t + 1)}")
            a(f"v_add_f32 {v(t + 2)}, {v(t + 2)}, {v(t + 3)}")
            a(f"v_cvt_pk_bf16_f32 {v(Y + i)}, {v(t)}, {v(t + 2)}")

    def gemm_loop(self, kind, stage, ready=None):
        a = self.a
        l_top, l_end = a.newlabel('G'), a.newlabel('G')
        if ready:
            a.wait(vm=0, lg=0)
            a.label(l_top)
            for par in range(2):
                ready()
                self.a_offsets(self.sSeg)
                self.a_issue(kind, par)
                self.gemm_task(kind, par, None, False)
                a(f"s_add_u32 {s(self.sSeg)}, {s(self.sSeg)}, {s(self.sStr)}")
                a(f"s_cmp_lt_u32 {s(self.sSeg)}, 64")
                a(f"s_cbranch_scc0 {l_end}" if par == 0 else f"s_cbranch_scc1 {l_top}")
            a.label(l_end)
            return
        self.a_offsets(self.sSeg)
        a.wait(vm=0, lg=0)
        self.a_issue(kind, 0)
        a.vm.append((set(), 'out'))
        a.raw(f"    buffer_load_dword {v(self.GM + 7)}, off, {s(self.rX0, 4)}, 0")
        st = a.state()
        l_last = [a.newlabel('G'), a.newlabel('G')]
        a.label(l_top)
        sts = []
        for par in range(2):
            a(f"s_add_u32 {s(self.sNext)}, {s(self.sSeg)}, {s(self.sStr)}")
            a(f"s_cmp_lt_u32 {s(self.sNext)}, 64")
            a(f"s_cbranch_scc0 {l_last[par]}")
            sts.append(a.state())
            self.gemm_task(kind, par, stage, True)
            a(f"s_mov_b32 {s(self.sSeg)}, {s(self.sNext)}")
        assert [x for x in a.vm] == st[0], (a.vm, st[0])
        a(f"s_branch {l_top}")
        for par in range(2):
            a.set_state(sts[par])
            a.label(l_last[par])
            self.gemm_task(kind, par, stage, False)
            if par == 0:
                a(f"s_branch {l_end}")
        a.label(l_end)

    def grp_role(self):
        self.div(self.sC[4], self.sC[5], self.sY, 10)

    def f1_bulk(self):
        a = self.a
        self.gemm_setup('f1row')
        self.colsum(BF, 'N')
        a(f"s_mov_b32 {s(self.sSeg)}, {s(self.sC[4])}")
        a(f"s_mov_b32 {s(self.sStr)}, {NGRP}")
        a(f"s_mov_b32 {s(self.sAb)}, 0")
        a(f"s_mov_b32 {s(self.sRb)}, 0")
        a(f"s_lshl_b32 {s(self.sOb)}, {s(self.sC[5])}, 12")
        a(f"s_add_u32 {s(self.sOb)}, {s(self.sOb)}, {ZT[0]}")
        a(f"s_mov_b32 {s(self.sOs)}, {SEG}")
        self.gemm_loop('f1row', None)
        self.done(F_F1, 1, self.GM)

    def f1_tail(self):
        a = self.a
        T = self.sT
        self.gemm_setup('f1')
        self.colsum(BF, 'N')
        a(f"s_sub_u32 {s(self.sSeg)}, {s(self.sC[4])}, 14")
        a(f"s_mov_b32 {s(self.sStr)}, 2")
        a(f"s_mul_i32 {s(self.sAb)}, {s(self.sW)}, 10240")
        a(f"s_add_u32 {s(self.sAb)}, {s(self.sAb)}, {XF[2]}")
        a(f"s_mov_b32 {s(self.sRb)}, 0")
        a(f"s_lshl_b32 {s(self.sOb)}, {s(self.sC[5])}, 12")
        a(f"s_add_u32 {s(self.sOb)}, {s(self.sOb)}, {ZT[1]}")
        a(f"s_mov_b32 {s(self.sOs)}, {SEG}")

        def ready():
            for half in range(2):
                a(f"s_lshl_b32 {s(T[5])}, {s(self.sSeg)}, 1")
                a(f"s_add_u32 {s(T[5])}, {s(T[5])}, {half}")
                self.div(T[6], T[7], T[5], 7)
                a(f"s_add_u32 {s(self.sThr)}, {s(T[6])}, 1")
                a(f"s_mul_i32 {s(T[7])}, {s(T[7])}, 20")
                self.poll_range(F_G4, s(T[7]), 20, s(self.sThr), self.GM)
        self.gemm_loop('f1', None, ready)
        self.done(F_F1, 2, self.GM)

    def f3(self):
        a = self.a
        l1, l2 = a.newlabel('F3'), a.newlabel('F3')
        a(f"s_mov_b32 {s(self.sSeg)}, {s(self.sC[4])}")
        a(f"s_mov_b32 {s(self.sStr)}, {NGRP}")
        self.lsel(self.sAb, ZP)
        a(f"s_mul_i32 {s(self.sT[2])}, {s(self.sW)}, 10240")
        a(f"s_add_u32 {s(self.sAb)}, {s(self.sAb)}, {s(self.sT[2])}")
        self.lsel(self.sOb, (XF[1], XF[3]))
        a(f"s_lshl_b32 {s(self.sT[2])}, {s(self.sC[5])}, 12")
        a(f"s_add_u32 {s(self.sOb)}, {s(self.sOb)}, {s(self.sT[2])}")
        a(f"s_add_u32 {s(self.sRb)}, {s(self.sT[2])}, {XF[2]}")
        a(f"s_mov_b32 {s(self.sOs)}, {SEG}")
        self.gemm_setup('f3row')
        a(f"s_add_u32 {s(self.sThr)}, {s(self.sL)}, 1")
        a(f"s_mul_i32 {s(self.sT[5])}, {s(self.sW)}, 40")
        self.poll_range(F_F2, s(self.sT[5]), 40, s(self.sThr), self.GM)
        a(f"s_cmp_lg_u32 {s(self.sL)}, 0")
        a(f"s_cbranch_scc1 {l1}")
        a(f"s_lshl_b32 {s(self.sRb)}, {s(self.sC[5])}, 7")
        self.gemm_loop('f3row', None)
        a(f"s_branch {l2}")
        a.label(l1)
        self.gemm_loop('f3', None)
        a.label(l2)
        self.done(F_F3, s(self.sThr), self.GM)

    def g1(self):
        a = self.a
        T = self.sT
        lv, lq, le = (a.newlabel('G1') for _ in range(3))
        a(f"s_mov_b32 {s(self.sSeg)}, 0")
        a(f"s_mov_b32 {s(self.sStr)}, 1")
        self.lsel(self.sAb, (XF[1], XF[3]))
        a(f"s_mul_i32 {s(T[2])}, {s(self.sW)}, 10240")
        a(f"s_add_u32 {s(self.sAb)}, {s(self.sAb)}, {s(T[2])}")
        a(f"s_mov_b32 {s(self.sCnt)}, {s(self.sL64)}")
        a(f"s_cmp_eq_u32 {s(self.sC[2])}, 1")
        a(f"s_cbranch_scc1 {lv}")
        a(f"s_cmp_eq_u32 {s(self.sC[2])}, 2")
        a(f"s_cbranch_scc1 {lq}")
        for kind in 'kvq':
            if kind != 'k':
                a.label(lv if kind == 'v' else lq)
                a.forget()
            if kind == 'q':
                self.lsel(self.sOb, QF)
                a(f"s_lshl_b32 {s(T[2])}, {s(self.sC[1])}, 13")
                a(f"s_lshl_b32 {s(T[3])}, {s(self.sC[3])}, 12")
                a(f"s_mov_b32 {s(self.sOs)}, {32 * 8192}")
            else:
                self.lsel(self.sOb, KV, 8192 if kind == 'v' else 0)
                a(f"s_lshl_b32 {s(T[2])}, {s(self.sC[1])}, 14")
                a(f"s_lshl_b32 {s(T[3])}, {s(self.sC[3])}, {12 if kind == 'v' else 10}")
                a(f"s_mov_b32 {s(self.sOs)}, {32 * 16384}")
            a(f"s_add_u32 {s(self.sOb)}, {s(self.sOb)}, {s(T[2])}")
            a(f"s_add_u32 {s(self.sOb)}, {s(self.sOb)}, {s(T[3])}")
            if kind != 'q':
                self.gemm_setup(kind)
            else:
                self.gemm_setup('q')
            if kind == 'k':
                lk = a.newlabel('G1')
                a(f"s_branch {lk}")
                continue
            if kind == 'q':
                a.label(lk)
            self.colsum(BQ, 'N' if kind == 'v' else 'T')
            a(f"s_add_u32 {s(self.sThr)}, {s(self.sL)}, 1")
            self.poll_range(F_F3, 0, 190, s(self.sThr), self.GM)
            self.gemm_loop(kind, F_G1)
            if kind == 'v':
                a(f"s_branch {le}")
        a.label(le)
        self.done(F_G1, s(self.sCnt), self.GM)

    def f2(self):
        a, ln = self.a, self.vLane
        T = self.sT
        C64, S64, N64, C32, S32, N32 = 16, 32, 48, 64, 72, 80
        T1, T2, WF, DR, DI, XR, XI = 88, 120, 152, 184, 200, 216, 232
        t = 2
        hv, fi = s(T[8]), s(T[9])
        a(f"s_and_b32 {hv}, {s(self.sW)}, 1")
        a(f"s_lshr_b32 {fi}, {s(self.sW)}, 1")
        self.poll_range(F_WT, 0, 160, 1, t)
        a(f"s_lshl_b32 {s(T[2])}, {s(self.sY)}, 1")
        a(f"s_add_u32 {s(T[10])}, {s(T[2])}, {fi}")
        a(f"s_lshl_b32 {s(T[2])}, {s(T[10])}, 4")
        a(f"s_mul_i32 {s(T[3])}, {hv}, {32 * 2 * 4 * 5120}")
        a(f"s_add_u32 {s(T[2])}, {s(T[2])}, {s(T[3])}")
        a(f"s_add_u32 {s(T[2])}, {s(T[2])}, {WT}")
        lanebits(a, t, ln, [(0, 5, 2 * 4 * 5120), (5, 1, 4 * 5120)], t + 1)
        for q in range(4):
            a(f"s_add_u32 {s(T[3])}, {s(T[2])}, {5120 * q}")
            a(f"buffer_load_dwordx4 {v(XR + 4 * q, 4)}, {v(t)}, {s(self.rWS, 4)}, {s(T[3])} offen sc1")
        idx = lambda r: 8 * (r >> 2) + (r & 3)
        a(f"s_lshl_b32 {s(T[2])}, {hv}, 5")
        k1, h4, r32 = t + 1, t + 2, t + 3
        lanebits(a, k1, ln, [(0, 5, 1)], t + 5, s(T[2]))
        lanebits(a, h4, ln, [(5, 1, 4)], t + 5)
        lanebits(a, r32, ln, [(0, 5, 1)], t + 5)
        x0, st, u = t + 5, t + 6, t + 8

        def table(mulreg, addreg_extra, N, n, emit):
            a(f"v_add_u32 {v(x0)}, {addreg_extra}, {v(h4)}")
            a(f"v_mul_u32_u24 {v(x0)}, {v(x0)}, {v(mulreg)}")
            a(f"v_cvt_f32_u32 {v(x0)}, {v(x0)}")
            a(f"v_cvt_f32_u32 {v(st)}, {v(mulreg)}")
            a(f"v_mul_f32 {v(x0)}, {f32(1 / N)}, {v(x0)}")
            a(f"v_mul_f32 {v(st)}, {f32(1 / N)}, {v(st)}")
            for r in range(n):
                emit(r, f"v_fmamk_f32 {{}}, {v(st)}, {f32(idx(r))}, {v(x0)}")

        def packed(C, S, Ng):
            def emit(r, ang):
                k = r & 1
                a(ang.format(v(u + k)))
                a(f"v_sin_f32 {v(u + 2 + k)}, {v(u + k)}")
                a(f"v_cos_f32 {v(u + k)}, {v(u + k)}")
                if k:
                    a(f"v_cvt_pk_bf16_f32 {v(S + (r >> 1))}, {v(u + 2)}, {v(u + 3)}")
                    a(f"v_cvt_pk_bf16_f32 {v(C + (r >> 1))}, {v(u)}, {v(u + 1)}")
                    a(f"v_xor_b32 {v(Ng + (r >> 1))}, 0x80008000, {v(S + (r >> 1))}")
            return emit

        def plain(Tb):
            def emit(r, ang):
                a(ang.format(v(Tb + r)))
                a(f"v_sin_f32 {v(Tb + 16 + r)}, {v(Tb + r)}")
                a(f"v_cos_f32 {v(Tb + r)}, {v(Tb + r)}")
            return emit
        table(k1, 0, 64, 32, packed(C64, S64, N64))
        table(r32, 0, 32, 16, packed(C32, S32, N32))
        table(k1, 0, 2048, 16, plain(T1))
        table(r32, s(T[2]), 2048, 16, plain(T2))
        a(f"s_mov_b32 {s(T[4])}, {f32(2 / (2048 * 640))}")
        a(f"s_cmp_eq_u32 {s(T[10])}, 319")
        a(f"s_cselect_b32 {s(T[3])}, {f32(1 / (2048 * 640))}, {s(T[4])}")
        for r in range(16):
            a(f"v_lshlrev_b32 {v(WF + r)}, 16, {v(XR + r)}")
            a(f"v_and_b32 {v(WF + 16 + r)}, 0xffff0000, {v(XR + r)}")
            a(f"v_mul_f32 {v(WF + r)}, {s(T[3])}, {v(WF + r)}")
            a(f"v_mul_f32 {v(WF + 16 + r)}, {s(T[3])}, {v(WF + 16 + r)}")
        gi, ti, xw, ow = t, t + 1, t + 2, t + 3
        lanebits(a, gi, ln, [(4, 2, 64)], t + 5)
        a(f"v_xor_b32 {v(gi)}, {v(gi)}, {v(self.vL16)}")
        a(f"v_and_b32 {v(gi)}, 255, {v(gi)}")
        lanebits(a, t + 6, ln, [(4, 2, SEG)], t + 5)
        a(f"v_add_u32 {v(gi)}, {v(gi)}, {v(t + 6)}")
        a(f"s_lshl_b32 {s(T[2])}, {fi}, 7")
        lanebits(a, ti, ln, [(4, 1, 32), (0, 2, 8)], t + 5, s(T[2]))
        lanebits(a, t + 6, ln, [(2, 2, 64)], t + 5)
        a(f"v_xor_b32 {v(ti)}, {v(ti)}, {v(t + 6)}")
        lanebits(a, t + 6, ln, [(5, 1, 1024), (2, 2, 256)], t + 5)
        a(f"v_add_u32 {v(ti)}, {v(ti)}, {v(t + 6)}")
        a(f"v_xor_b32 {v(t + 4)}, 64, {v(ti)}")
        ti2 = t + 4
        l1, l2 = a.newlabel('F2'), a.newlabel('F2')
        a(f"s_cmp_lg_u32 {s(self.sL)}, 0")
        a(f"s_cbranch_scc1 {l1}")
        self.poll_range(F_F1, 0, 190, 1, 8)
        a(f"s_branch {l2}")
        a.label(l1)
        self.poll_range(F_F1, 140, 20, 2, 8)
        a.label(l2)
        self.lsel(T[2], ZT)
        a(f"s_lshl_b32 {s(T[3])}, {s(self.sY)}, 8")
        a(f"s_mul_i32 {s(T[4])}, {s(self.sW)}, {16 * SEG}")
        a(f"s_add_u32 {s(T[11])}, {s(T[3])}, {s(T[4])}")
        a(f"s_add_u32 {s(T[2])}, {s(T[2])}, {s(T[11])}")
        a(f"s_lshl_b32 {s(T[3])}, {s(self.sW)}, 12")
        for i in range(4):
            a(f"s_add_u32 m0, {s(T[3])}, {1024 * i}")
            a(f"s_add_u32 {s(T[4])}, {s(T[2])}, {4 * SEG * i}")
            a(f"buffer_load_dwordx4 {v(gi)}, {s(self.rWS, 4)}, {s(T[4])} offen sc1 lds")
        a(f"s_lshl_b32 {s(T[2])}, {s(self.sW)}, 12")
        a(f"s_add_u32 {s(T[2])}, {s(T[2])}, 16384")
        a(f"v_add_u32 {v(xw)}, {s(T[2])}, {v(self.vL16)}")
        a(f"s_lshl_b32 {s(T[2])}, {fi}, 13")
        a(f"s_add_u32 {s(T[2])}, {s(T[2])}, 16384")
        xr_ = t + 5
        lanebits(a, xr_, ln, [(0, 2, 16), (2, 1, 128), (3, 1, 64), (4, 2, 256)], t + 6, s(T[2]))
        a(f"s_lshl_b32 {s(T[2])}, {fi}, 7")
        lanebits(a, ow, ln, [(5, 1, 16)], t + 6, s(T[2]))
        lanebits(a, t + 7, ln, [(0, 3, 16)], t + 6)
        a(f"v_xor_b32 {v(ow)}, {v(ow)}, {v(t + 7)}")
        a(f"s_lshl_b32 {s(T[2])}, {hv}, 13")
        a(f"s_add_u32 {s(T[2])}, {s(T[2])}, 32768")
        lanebits(a, t + 7, ln, [(0, 5, 256)], t + 6, s(T[2]))
        a(f"v_add_u32 {v(ow)}, {v(ow)}, {v(t + 7)}")
        a.wait(vm=0)
        a("s_barrier")
        for ks in range(4):
            for hi in range(2):
                a(f"ds_read_b64_tr_b16 {v(XR + 4 * ks + 2 * hi, 2)}, {v(ti)} offset:{4096 * ks + 2048 * hi}")
                a(f"ds_read_b64_tr_b16 {v(XI + 4 * ks + 2 * hi, 2)}, {v(ti2)} offset:{4096 * ks + 2048 * hi}")

        def cmm(nks, data_is_a, C, S, Ng, conj):
            sp, sn = (S, Ng) if not conj else (Ng, S)
            for ks in range(nks):
                for D, X, K, first in ((DR, XR, C, True), (DI, XI, C, True), (DR, XI, sp, False), (DI, XR, sn, False)):
                    x, y = v(X + 4 * ks, 4), v(K + 4 * ks, 4)
                    if not data_is_a:
                        x, y = y, x
                    a(f"v_mfma_f32_32x32x16_bf16 {v(D, 16)}, {x}, {y}, {'0' if ks == 0 and first else v(D, 16)}")

        def cmul(Tb, sign):
            p, m = ('', '-') if sign > 0 else ('-', '')
            for r in range(0, 16, 2):
                for k in range(2):
                    a(f"v_mul_f32 {v(u + k)}, {v(DR + r + k)}, {v(Tb + r + k)}")
                    a(f"v_mul_f32 {v(u + 2 + k)}, {v(DI + r + k)}, {v(Tb + r + k)}")
                    a(f"v_fma_f32 {v(u + k)}, {m}{v(DI + r + k)}, {v(Tb + 16 + r + k)}, {v(u + k)}")
                    a(f"v_fma_f32 {v(u + 2 + k)}, {p}{v(DR + r + k)}, {v(Tb + 16 + r + k)}, {v(u + 2 + k)}")
                a(f"v_cvt_pk_bf16_f32 {v(XR + (r >> 1))}, {v(u)}, {v(u + 1)}")
                a(f"v_cvt_pk_bf16_f32 {v(XI + (r >> 1))}, {v(u + 2)}, {v(u + 3)}")
        cmm(4, True, C64, S64, N64, False)
        cmul(T1, -1)
        cmm(2, False, C32, S32, N32, False)
        cmul(WF, +1)
        cmm(2, True, C32, S32, N32, True)
        cmul(T2, +1)
        for ri, X in enumerate((XR, XI)):
            for ks in range(2):
                a(f"ds_write_b128 {v(xw)}, {v(X + 4 * ks, 4)} offset:{2048 * ri + 1024 * ks}")
        a.wait(lg=0)
        a("s_barrier")
        for ks in range(4):
            for ri, X in enumerate((XR, XI)):
                a(f"ds_read_b128 {v(X + 4 * ks, 4)}, {v(xr_)} offset:{4096 * (ks >> 1) + 2048 * ri + 1024 * (ks & 1)}")
        cmm(4, True, C64, S64, N64, True)
        rb, go = t, t + 1
        lanebits(a, rb, ln, [(4, 2, 16)], t + 6)
        a(f"v_xor_b32 {v(rb)}, {v(rb)}, {v(self.vL16)}")
        a(f"s_lshl_b32 {s(T[2])}, {s(self.sW)}, 12")
        a(f"s_add_u32 {s(T[2])}, {s(T[2])}, 32768")
        a(f"v_add_u32 {v(rb)}, {s(T[2])}, {v(rb)}")
        a(f"v_xor_b32 {v(t + 4)}, 64, {v(rb)}")
        lanebits(a, go, ln, [(4, 2, SEG), (0, 4, 16)], t + 6)
        for ri, D in enumerate((DR, DI)):
            for p in range(2):
                X = XR + 8 * ri + 4 * p
                for i in range(4):
                    a(f"v_cvt_pk_bf16_f32 {v(X + i)}, {v(D + 8 * p + 2 * i)}, {v(D + 8 * p + 2 * i + 1)}")
                a(f"v_xor_b32 {v(u + 2 * ri + p)}, {64 * ri + 32 * p}, {v(ow)}")
                a(f"ds_write_b128 {v(u + 2 * ri + p)}, {v(X, 4)}")
        self.lsel(T[2], ZP)
        a(f"s_add_u32 {s(T[2])}, {s(T[2])}, {s(T[11])}")
        a.wait(lg=0)
        a("s_barrier")
        for i in range(4):
            a(f"ds_read_b128 {v(XI + 4 * i, 4)}, {v(rb if i % 2 == 0 else t + 4)} offset:{1024 * i}")
        for i in range(4):
            a(f"s_add_u32 {s(T[4])}, {s(T[2])}, {4 * SEG * i}")
            a(f"buffer_store_dwordx4 {v(XI + 4 * i, 4)}, {v(go)}, {s(self.rWS, 4)}, {s(T[4])} offen sc1")
        a(f"s_add_u32 {s(self.sThr)}, {s(self.sL)}, 1")
        self.done(F_F2, s(self.sThr), 8)

    def at(self):
        a, ln = self.a, self.vLane
        T = self.sT
        Q, K, V, KM, VM, MK, SX, SM, O = 16, 48, 80, 112, 144, 152, 168, 184, 16
        KA, VA, KMA, VMA, OA, FA, t = 2, 3, 4, 5, 6, 7, 8
        h = s(T[8])
        a(f"s_sub_u32 {h}, {s(self.sY)}, 160")
        lanebits(a, KA, ln, [(1, 1, 2048), (3, 1, 4096), (2, 1, 64), (4, 1, 128), (5, 1, 32), (0, 1, 16)], t)
        lanebits(a, VA, ln, [(4, 1, 1024), (5, 1, 256), (0, 2, 16), (2, 1, 128), (3, 1, 64)], t)
        lanebits(a, KMA, ln, [(0, 1, 256), (5, 1, 128), (2, 2, 8)], t, s(self.sLA))
        a(f"s_mov_b32 m0, {s(self.sLA)}")
        lanebits(a, VMA, ln, [(0, 2, 8), (2, 1, 64), (3, 1, 32), (4, 2, 128)], t, 2048)
        lanebits(a, OA, ln, [(4, 1, 131072), (5, 1, 256), (0, 4, 16)], t)
        lanebits(a, t + 1, ln, [(0, 2, 1), (2, 1, 8), (3, 1, 4), (4, 1, 16)], t)
        lanebits(a, t + 2, ln, [(5, 1, 8)], t)
        a(f"v_sub_u32 {v(t + 1)}, {v(t + 1)}, {v(t + 2)}")
        a(f"v_mov_b32 {v(t + 2)}, {f32(-1e30)}")
        for r in range(16):
            a(f"v_cmp_gt_i32 vcc, {16 * (r >> 3) + 4 * ((r >> 2) & 1) + (r & 3)}, {v(t + 1)}")
            a(f"v_cndmask_b32 {v(MK + r)}, 0, {v(t + 2)}, vcc")
        a(f"v_mov_b32 {v(t + 1)}, {D_NEAR}")
        self.poll([t + 1], '0', 1, t, srd=self.rDBG)
        a(f"v_readfirstlane_b32 {s(T[2])}, {v(t)}")
        a(f"s_and_b32 {s(T[2])}, {s(T[2])}, 2")
        a(f"s_lshl_b32 {s(T[2])}, {s(T[2])}, 12")
        a(f"s_lshr_b32 {s(T[3])}, {h}, 3")
        a(f"s_lshl_b32 {s(T[3])}, {s(T[3])}, 9")
        a(f"s_add_u32 {s(T[2])}, {s(T[2])}, {s(T[3])}")
        a(f"s_and_b32 {s(T[3])}, {h}, 1")
        a(f"s_lshl_b32 {s(T[3])}, {s(T[3])}, 8")
        a(f"s_add_u32 {s(T[2])}, {s(T[2])}, {s(T[3])}")
        a(f"s_bfe_u32 {s(T[3])}, {h}, 0x20001")
        a(f"s_lshl_b32 {s(T[3])}, {s(T[3])}, 6")
        a(f"s_add_u32 {s(T[2])}, {s(T[2])}, {s(T[3])}")
        lanebits(a, FA, ln, [(0, 1, 16384)], t, s(T[2]))
        self.poll_range(F_PF, 160, 32, 1, t)
        a(f"s_add_u32 {s(self.sThr)}, {s(self.sL64)}, 64")
        a(f"s_mul_i32 {s(T[5])}, {h}, 6")
        self.poll_range(F_G1, s(T[5]), 6, s(self.sThr), t)
        a(f"s_mov_b32 {s(self.sSeg)}, {s(self.sW)}")
        a(f"s_add_u32 {s(self.sCnt)}, {s(self.sL64)}, 1")
        a(f"s_mov_b32 {s(self.sC[6])}, {f32(128 ** -0.5 * np.log2(np.e))}")
        sc = s(self.sC[6])
        l_top = a.newlabel('AT')
        a.wait(vm=0, lg=0)
        a.label(l_top)
        a(f"s_lshl_b32 {s(T[2])}, {s(self.sSeg)}, 5")
        a(f"s_add_u32 {s(T[2])}, {s(T[2])}, {h}")
        self.lsel(T[3], QF)
        a(f"s_lshl_b32 {s(T[4])}, {s(T[2])}, 13")
        a(f"s_add_u32 {s(T[3])}, {s(T[3])}, {s(T[4])}")
        self.lsel(T[5], KV)
        a(f"s_lshl_b32 {s(T[4])}, {s(T[2])}, 14")
        a(f"s_add_u32 {s(T[5])}, {s(T[5])}, {s(T[4])}")
        for ks in range(8):
            if ks == 4:
                a(f"s_add_u32 {s(T[3])}, {s(T[3])}, 4096")
            a(f"buffer_load_dwordx4 {v(Q + 4 * ks, 4)}, {v(self.vL16)}, {s(self.rWS, 4)}, {s(T[3])} offen offset:{1024 * (ks & 3)} sc1")
            a(f"buffer_load_dwordx4 {v(K + 4 * ks, 4)}, {v(KA)}, {s(self.rWS, 4)}, {s(T[5])} offen offset:{256 * ks} sc1")
        for i in range(8):
            if i % 4 == 0:
                a(f"s_add_u32 {s(T[5])}, {s(T[5])}, {8192 if i == 0 else 4096}")
            a(f"buffer_load_dwordx4 {v(V + 4 * i, 4)}, {v(VA)}, {s(self.rWS, 4)}, {s(T[5])} offen offset:{2048 * ((i >> 1) & 1) + 512 * (i & 1)} sc1")
        for ks in range(8):
            a(f"v_mfma_f32_32x32x16_bf16 {v(SX, 16)}, {v(K + 4 * ks, 4)}, {v(Q + 4 * ks, 4)}, {v(MK if ks == 0 else SX, 16)}")
        self.lsel(T[3], HIST)
        a(f"s_lshl_b32 {s(T[4])}, {s(self.sSeg)}, 15")
        a(f"s_add_u32 {s(T[3])}, {s(T[3])}, {s(T[4])}")
        self.poll([FA], s(T[3]), -1, t, cmp='eq')
        self.lsel(T[3], KVM)
        a(f"s_lshl_b32 {s(T[4])}, {s(T[2])}, 12")
        a(f"s_add_u32 {s(T[3])}, {s(T[3])}, {s(T[4])}")
        for i in range(2):
            a(f"buffer_load_dwordx4 {v(self.vL16)}, {s(self.rWS, 4)}, {s(T[3])} offen offset:{1024 * i} sc1 lds", tag='km')
        for i in range(4):
            a(f"buffer_load_dwordx2 {v(VM + 2 * i, 2)}, {v(VMA)}, {s(self.rWS, 4)}, {s(T[3])} offen offset:{512 * i} sc1")
        M, M2 = t, t + 1
        a(f"v_max3_f32 {v(M)}, {v(SX)}, {v(SX + 1)}, {v(SX + 2)}")
        for r in range(3, 15, 2):
            a(f"v_max3_f32 {v(M)}, {v(M)}, {v(SX + r)}, {v(SX + r + 1)}")
        a(f"v_max_f32 {v(M)}, {v(M)}, {v(SX + 15)}")
        a.wait_tag('km')
        for ks in range(8):
            for hi in range(2):
                a(f"ds_read_b64_tr_b16 {v(KM + 4 * ks + 2 * hi, 2)}, {v(KMA)} offset:{512 * (ks >> 1) + 64 * (ks & 1) + 32 * hi}")
        for ks in range(8):
            a(f"v_mfma_f32_32x32x16_bf16 {v(SM, 16)}, {v(KM + 4 * ks, 4)}, {v(Q + 4 * ks, 4)}, {'0' if ks == 0 else v(SM, 16)}")
        a(f"v_max3_f32 {v(M)}, {v(M)}, {v(SM)}, {v(SM + 1)}")
        a(f"v_max3_f32 {v(M)}, {v(M)}, {v(SM + 2)}, {v(SM + 3)}")
        a(f"v_mov_b32 {v(M2)}, {v(M)}")
        a(f"v_permlane32_swap_b32 {v(M)}, {v(M2)}")
        a(f"v_max_f32 {v(M)}, {v(M)}, {v(M2)}")
        a(f"v_mul_f32 {v(M)}, {sc}, {v(M)}")
        for r in range(20):
            a(f"v_fma_f32 {v(SX + r)}, {v(SX + r)}, {sc}, -{v(M)}")
        for r in range(20):
            a(f"v_exp_f32 {v(SX + r)}, {v(SX + r)}")
        a(f"v_pk_add_f32 {v(M, 2)}, {v(SX, 2)}, {v(SX + 2, 2)}")
        for r in range(4, 20, 2):
            a(f"v_pk_add_f32 {v(M, 2)}, {v(M, 2)}, {v(SX + r, 2)}")
        a(f"v_add_f32 {v(M)}, {v(M)}, {v(M2)}")
        a(f"v_mov_b32 {v(M2)}, {v(M)}")
        a(f"v_permlane32_swap_b32 {v(M)}, {v(M2)}")
        a(f"v_add_f32 {v(M)}, {v(M)}, {v(M2)}")
        a(f"v_rcp_f32 {v(M)}, {v(M)}")
        P = SM + 4
        for r in range(0, 20, 2):
            a(f"v_pk_mul_f32 {v(SX + r, 2)}, {v(SX + r, 2)}, {v(M, 2)} op_sel_hi:[1,0]")
            a(f"v_cvt_pk_bf16_f32 {v(P + (r >> 1))}, {v(SX + r)}, {v(SX + r + 1)}")
        for i in range(4):
            a(f"v_mfma_f32_32x32x8_bf16 {v(O + 16 * i, 16)}, {v(VM + 2 * i, 2)}, {v(P + 8, 2)}, 0")
        for i in range(4):
            for p in range(2):
                a(f"v_mfma_f32_32x32x16_bf16 {v(O + 16 * i, 16)}, {v(V + 8 * i + 4 * p, 4)}, {v(P + 4 * p, 4)}, {v(O + 16 * i, 16)}")
        self.lsel(T[3], OF)
        a(f"s_lshl_b32 {s(T[4])}, {s(self.sSeg)}, 18")
        a(f"s_add_u32 {s(T[3])}, {s(T[3])}, {s(T[4])}")
        a(f"s_lshl_b32 {s(T[4])}, {h}, 12")
        a(f"s_add_u32 {s(T[3])}, {s(T[3])}, {s(T[4])}")
        for i in range(8):
            for j in range(4):
                a(f"v_cvt_pk_bf16_f32 {v(KM + 4 * i + j)}, {v(O + 8 * i + 2 * j)}, {v(O + 8 * i + 2 * j + 1)}")
            a(f"buffer_store_dwordx4 {v(KM + 4 * i, 4)}, {v(OA)}, {s(self.rWS, 4)}, {s(T[3])} offen offset:{512 * i} sc1")
        a.wait(vm=0)
        self.flag(F_AT, s(self.sCnt), t, perwave=True)
        a(f"s_add_u32 {s(self.sCnt)}, {s(self.sCnt)}, 1")
        a(f"s_add_u32 {s(self.sSeg)}, {s(self.sSeg)}, 4")
        a(f"s_cmp_lt_u32 {s(self.sSeg)}, 64")
        a(f"s_cbranch_scc1 {l_top}")

    def g4(self):
        a, ln = self.a, self.vLane
        T = self.sT
        wreg = lambda i: 96 + 4 * i if i < 40 else BF + 4 * (i - 40)
        A, ACC, RES, t = 32, 16, 24, 8
        GA_, TA, XA_, YA, FA, WR = 2, 3, 4, 5, 6, 7
        grp, sl = self.sC[6], self.sC[7]
        self.div(grp, sl, self.sY, 20)
        self.srd(self.rT, 64, 4096 * 1280)
        lanebits(a, GA_, ln, [(2, 4, 1280), (0, 2, 16)], t)
        lanebits(a, TA, ln, [(4, 2, 512), (2, 2, 64), (0, 2, 16)], t, s(self.sLA))
        a(f"s_mul_i32 {s(T[2])}, {s(self.sW)}, {1024 * 1280}")
        a(f"s_lshl_b32 {s(T[3])}, {s(sl)}, 6")
        a(f"s_add_u32 {s(T[2])}, {s(T[2])}, {s(T[3])}")
        for c in range(4):
            for i in range(16):
                a(f"s_add_u32 m0, {s(self.sLA)}, {1024 * i}")
                a(f"s_add_u32 {s(T[3])}, {s(T[2])}, {16 * 1280 * (16 * c + i)}")
                a(f"buffer_load_dwordx4 {v(GA_)}, {s(self.rT, 4)}, {s(T[3])} offen lds")
            a.wait(vm=0)
            for k in range(8):
                for tile in range(2):
                    for hi in range(2):
                        a(f"ds_read_b64_tr_b16 {v(wreg(2 * (8 * c + k) + tile) + 2 * hi, 2)}, {v(TA)} offset:{2048 * k + 256 * hi + 8 * tile}")
            a.wait(lg=0)
        lanebits(a, XA_, ln, [(4, 2, 512), (0, 4, 16)], t)
        lanebits(a, YA, ln, [(0, 2, 1280), (2, 1, 8 * 1280), (3, 1, 4 * 1280), (4, 2, 16)], t)
        a(f"s_lshl_b32 {s(T[2])}, {s(self.sW)}, 7")
        a(f"s_add_u32 {s(T[2])}, {s(T[2])}, {F_AT + 160 * 16}")
        lanebits(a, FA, ln, [(0, 3, 16)], t, s(T[2]))
        a(f"s_lshl_b32 {s(T[2])}, {s(self.sW)}, 11")
        a(f"v_add_u32 {v(WR)}, {s(T[2])}, {v(self.vL16)}")
        a(f"s_mov_b32 {s(self.sSeg)}, {s(grp)}")
        a(f"s_mov_b32 {s(self.sCnt)}, 1")
        a(f"s_mov_b32 {s(self.sRo)}, 0")
        l_top, l_nw, l_l1, l_st = (a.newlabel('G4') for _ in range(4))
        a.wait(vm=0, lg=0)
        a.label(l_top)
        a(f"s_lshr_b32 {s(T[8])}, {s(self.sSeg)}, 1")
        a(f"s_and_b32 {s(T[9])}, {s(self.sSeg)}, 1")
        a(f"s_mul_i32 {s(T[10])}, {s(T[8])}, {SEG}")
        a(f"s_lshl_b32 {s(T[2])}, {s(sl)}, 11")
        a(f"s_add_u32 {s(T[11])}, {s(T[10])}, {s(T[2])}")
        a(f"s_lshl_b32 {s(T[2])}, {s(T[9])}, 8")
        a(f"s_add_u32 {s(T[11])}, {s(T[11])}, {s(T[2])}")
        self.lsel(T[2], (XF[1], XF[3]))
        a(f"s_add_u32 {s(T[2])}, {s(T[2])}, {s(T[11])}")
        a(f"buffer_load_dwordx4 {v(RES, 4)}, {v(XA_)}, {s(self.rWS, 4)}, {s(T[2])} offen sc1")
        a(f"s_lshr_b32 {s(self.sThr)}, {s(T[8])}, 2")
        a(f"s_add_u32 {s(self.sThr)}, {s(self.sThr)}, {s(self.sL64)}")
        a(f"s_add_u32 {s(self.sThr)}, {s(self.sThr)}, 1")
        a(f"s_and_b32 {s(T[2])}, {s(T[8])}, 3")
        a(f"s_lshl_b32 {s(T[2])}, {s(T[2])}, 2")
        self.poll([FA], s(T[2]), s(self.sThr), t)
        self.lsel(self.sAo, OF)
        a(f"s_lshl_b32 {s(T[2])}, {s(self.sSeg)}, 17")
        a(f"s_add_u32 {s(self.sAo)}, {s(self.sAo)}, {s(T[2])}")
        a(f"s_lshl_b32 {s(T[2])}, {s(self.sW)}, 15")
        a(f"s_add_u32 {s(self.sAo)}, {s(self.sAo)}, {s(T[2])}")

        def ld(k):
            if k % 4 == 0 and k:
                a(f"s_add_u32 {s(self.sAo)}, {s(self.sAo)}, 4096")
            a(f"buffer_load_dwordx4 {v(A + 4 * (k % 16), 4)}, {v(self.vL16)}, {s(self.rWS, 4)}, {s(self.sAo)} offen offset:{1024 * (k % 4)} sc1")
        for k in range(16):
            ld(k)
        for k in range(32):
            for tile in range(2):
                acc = v(ACC + 4 * tile, 4)
                a(f"v_mfma_f32_16x16x32_bf16 {acc}, {v(wreg(2 * k + tile), 4)}, {v(A + 4 * (k % 16), 4)}, {'0' if k == 0 else acc}")
            if k + 16 < 32:
                ld(k + 16)
        a(f"v_add_u32 {v(t)}, {s(self.sRo)}, {v(WR)}")
        a(f"ds_write_b128 {v(t)}, {v(ACC, 4)}")
        a(f"ds_write_b128 {v(t)}, {v(ACC + 4, 4)} offset:1024")
        a.wait(lg=0)
        a("s_barrier")
        a(f"s_cmp_lg_u32 {s(self.sW)}, 0")
        a(f"s_cbranch_scc1 {l_nw}")
        for i in range(6):
            a(f"ds_read_b128 {v(A + 4 * i, 4)}, {v(t)} offset:{2048 + 1024 * i}")
        for src in range(3):
            for i in range(0, 8, 2):
                a(f"v_pk_add_f32 {v(ACC + i, 2)}, {v(ACC + i, 2)}, {v(A + 8 * src + i, 2)}")
        Y = A + 24
        for i in range(4):
            a(f"v_cvt_pk_bf16_f32 {v(Y + i)}, {v(ACC + 2 * i)}, {v(ACC + 2 * i + 1)}")
        self.residual(Y, RES, A)
        a(f"s_cmp_lg_u32 {s(self.sL)}, 0")
        a(f"s_cbranch_scc1 {l_l1}")
        a(f"s_add_u32 {s(T[2])}, {s(T[11])}, {XF[2]}")
        a(f"buffer_store_dwordx4 {v(Y, 4)}, {v(XA_)}, {s(self.rWS, 4)}, {s(T[2])} offen sc1")
        a.wait(vm=0)
        self.flag(F_G4, s(self.sCnt), t)
        a(f"s_branch {l_nw}")
        a.label(l_l1)
        a(f"s_mul_i32 {s(T[2])}, {s(T[9])}, {16 * 1280}")
        a(f"s_add_u32 {s(T[2])}, {s(T[2])}, {s(T[10])}")
        a(f"s_lshl_b32 {s(T[3])}, {s(sl)}, 6")
        a(f"s_add_u32 {s(T[2])}, {s(T[2])}, {s(T[3])}")
        a(f"buffer_store_dwordx4 {v(Y, 4)}, {v(YA)}, {s(self.rOUT, 4)}, {s(T[2])} offen")
        a.label(l_nw)
        a(f"s_xor_b32 {s(self.sRo)}, {s(self.sRo)}, 8192")
        a(f"s_add_u32 {s(self.sCnt)}, {s(self.sCnt)}, 1")
        a(f"s_add_u32 {s(self.sSeg)}, {s(self.sSeg)}, 7")
        a(f"s_cmp_lt_u32 {s(self.sSeg)}, 128")
        a(f"s_cbranch_scc1 {l_top}")
        a.wait(vm=0)
        a("s_barrier")

    def program(self, l_end, upto=99):
        a = self.a
        Y = s(self.sY)

        def only(lo, hi, fn):
            l = a.newlabel('R')
            if lo > 0:
                a(f"s_cmp_lt_u32 {Y}, {lo}")
                a(f"s_cbranch_scc1 {l}")
            if hi < 192:
                a(f"s_cmp_ge_u32 {Y}, {hi}")
                a(f"s_cbranch_scc1 {l}")
            fn()
            a.label(l)

        a(f"v_and_b32 {v(self.vLane)}, 63, v0")
        a(f"v_lshlrev_b32 {v(self.vL16)}, 4, {v(self.vLane)}")
        self.srd(self.rWS, 96, WS_BYTES)
        self.srd(self.rX0, 0, 2048 * 1280)
        self.srd(self.rOUT, 80, 2048 * 1280)
        self.srd(self.rDBG, 88, 256)
        a(f"s_mul_i32 {s(self.sLA)}, {s(self.sW)}, 20480")
        a(f"s_add_u32 {s(self.sLA)}, {s(self.sLA)}, {L_A}")
        a(f"s_mov_b32 {s(self.sL)}, 0")
        a(f"s_mov_b32 {s(self.sL64)}, 0")
        self.init_flags()
        self.grp_role()
        only(0, 160, lambda: self.wt_issue(200))
        self.qkv_issue(2)
        self.gen_dft(BF, False, self.sC[5], 4)
        a.wait(vm=20)
        only(0, 160, lambda: self.wt_store(200))
        self.wait_init(4)
        only(0, 160, lambda: self.done(F_WT, 1, 4))
        self.qkv_fetch(2)
        only(0, 190, self.f1_bulk)
        only(160, 192, self.prefill)
        self.gen_dft(BI, True, self.sC[5], 4)
        l_layer = a.newlabel('LAYER')
        a.wait(vm=0, lg=0)
        a.label(l_layer)
        if upto >= 2:
            only(0, 160, self.f2)
        if upto >= 3:
            only(0, 190, self.f3)
        if upto >= 4:
            self.g1()
        if upto >= 5:
            only(160, 192, self.at)
        if upto >= 6:
            only(0, 140, self.g4)
        if upto >= 7:
            a(f"s_cmp_lg_u32 {s(self.sL)}, 0")
            a(f"s_cbranch_scc1 {l_end}")
            only(140, 160, self.f1_tail)
        if upto >= 8:
            a(f"s_mov_b32 {s(self.sL)}, 1")
            a(f"s_mov_b32 {s(self.sL64)}, 64")
            a.wait(vm=0, lg=0)
            a(f"s_branch {l_layer}")
        else:
            a(f"s_branch {l_end}")
```
